```python
import torch

def _softmax(x, axis=-1):
    return torch.softmax(x, dim=axis)
def _gelu(x):
    return torch.nn.functional.gelu(x, approximate="tanh")
def _silu(x):
    return torch.nn.functional.silu(x)
def _sigmoid(x):
    return torch.sigmoid(x)
def _layernorm(x, axis=-1, eps=1e-5):
    m = x.mean(dim=axis, keepdim=True)
    v = x.var(dim=axis, keepdim=True, unbiased=False)
    return (x - m) / torch.sqrt(v + eps)
def _scatter_add(tgt, idx, src, axis=0):
    return tgt.clone().index_add_(axis, idx, src)
def _segment_sum(src, seg, n):
    out = torch.zeros((n,) + src.shape[1:], dtype=src.dtype)
    return out.index_add_(0, seg, src)
def _pad(x, pw):
    flat = tuple(v for pair in reversed(pw) for v in pair)
    return torch.nn.functional.pad(x, flat)

kernel_name = 'gated_mix__mha_block_cached__swiglu_ffn__decode'

def setup_inputs():

    _w = (lambda a: (lambda t: t.to(torch.bfloat16) if t.is_floating_point() else t)(torch.as_tensor(a)))
    def _A_setup():
        B, Sq, D = 4, 1, 512
        H, Sk, Dh = 32, 8192, 128
        return {
            "x": _w((lambda *s: torch.randn(*s, dtype=torch.bfloat16) * 0.05)(B, Sq, D)),
            "k_cache": _w((lambda *s: torch.randn(*s, dtype=torch.bfloat16) * 6.4)(B, H, Sk, Dh)),
            "v_cache": _w((lambda *s: torch.randn(*s, dtype=torch.bfloat16) * 1.6)(B, H, Sk, Dh)),
            "wq": _w((lambda *s: torch.randn(*s, dtype=torch.bfloat16) * 6.4)(D, H * Dh) * (D ** -0.5)),
            "wo": _w((lambda *s: torch.randn(*s, dtype=torch.bfloat16) * 1.6)(H * Dh, D) * ((H * Dh) ** -0.5)),
        }
    _A_in = _A_setup()

    def _B_setup():
        B, S, D, F = 4, 1, 512, 1376
        return {
            "x": _w((lambda *s: torch.randn(*s, dtype=torch.bfloat16) * 0.05)(B, S, D)),
            "w_gate": _w((lambda *s: torch.randn(*s, dtype=torch.bfloat16) * 0.2)(D, F)),
            "w_up": _w((lambda *s: torch.randn(*s, dtype=torch.bfloat16) * 0.2)(D, F)),
            "w_down": _w((lambda *s: torch.randn(*s, dtype=torch.bfloat16) * 0.2)(F, D)),
        }
    _B_in = _B_setup()

    return {
        "A_x": _A_in["x"],
        "A_k_cache": _A_in["k_cache"],
        "A_v_cache": _A_in["v_cache"],
        "A_wq": _A_in["wq"],
        "A_wo": _A_in["wo"],
        "B_x": _B_in["x"],
        "B_w_gate": _B_in["w_gate"],
        "B_w_up": _B_in["w_up"],
        "B_w_down": _B_in["w_down"],
        "gate_w": _w((lambda *s: torch.randn(*s, dtype=torch.bfloat16) * 0.05)(512) * 16.0),
    }

def reference(A_x, A_k_cache, A_v_cache, A_wq, A_wo, B_x, B_w_gate, B_w_up, B_w_down, gate_w):
    def _A_ref(x, k_cache, v_cache, wq, wo):
        B, Sq, D = x.shape
        H, Dh = 32, 128
        q = (lambda x, *d: x.permute(*d))((x @ wq).reshape(B, Sq, H, Dh), 0, 2, 1, 3)
        scores = torch.einsum("bhqd,bhkd->bhqk", q, k_cache) * (Dh ** -0.5)
        p = _softmax(scores, axis=-1)
        o = torch.einsum("bhqk,bhkd->bhqd", p, v_cache)
        return (lambda x, *d: x.permute(*d))(o, 0, 2, 1, 3).reshape(B, Sq, H * Dh) @ wo

    def _B_ref(x, w_gate, w_up, w_down):
        g = _silu(x @ w_gate)
        u = x @ w_up
        return (g * u) @ w_down

    x = A_x
    g = _sigmoid((x * gate_w).sum(-1, keepdims=True))
    a = _A_ref(x, A_k_cache, A_v_cache, A_wq, A_wo)
    b = _B_ref(x, B_w_gate, B_w_up, B_w_down)
    return g * a + (1 - g) * b
```

```python
import re

TRANS = ("v_exp_f32", "v_log_f32", "v_rcp_f32", "v_rsq_f32", "v_sqrt_f32", "v_sin_f32", "v_cos_f32")
_REG = re.compile(r"\b([vsa])(\d+)\b|\b([vsa])\[(\d+):(\d+)\]|\b(vcc|exec|m0)\b")


def regs_of(text):
    out = []
    for m in _REG.finditer(text):
        if m.group(1):
            out.append((m.group(1), int(m.group(2))))
        elif m.group(3):
            out += [(m.group(3), i) for i in range(int(m.group(4)), int(m.group(5)) + 1)]
        else:
            out.append((m.group(6), 0))
    return out


def split_ops(rest):
    ops, depth, cur = [], 0, ""
    for ch in rest:
        if ch == "[":
            depth += 1
        if ch == "]":
            depth -= 1
        if ch == "," and depth == 0:
            ops.append(cur.strip())
            cur = ""
        else:
            cur += ch
    if cur.strip():
        ops.append(cur.strip())
    return ops


class Ins:
    def __init__(self, text):
        self.text = text
        t = text.split(";")[0].strip()
        parts = t.split(None, 1)
        self.op = parts[0]
        rest = parts[1] if len(parts) > 1 else ""
        self.ops = split_ops(rest)
        op = self.op
        self.valu = op.startswith("v_") and not op.startswith("v_mfma")
        self.mfma = op.startswith("v_mfma")
        self.vmem = op.startswith(("buffer_", "global_", "flat_"))
        self.ds = op.startswith("ds_")
        self.dpp = "_dpp" in op or any(k in rest for k in ("row_", "quad_perm"))
        self.trans = op.startswith(TRANS)
        self.dot = op.startswith("v_dot")
        self.perml = op.startswith("v_permlane")
        self.rdlane = op.startswith(("v_readlane", "v_readfirstlane"))
        self.store = self.vmem and ("store" in op or "atomic" in op)
        self.wide_store = self.vmem and "store" in op and ("x3" in op or "x4" in op)
        self.states = 1
        if op == "s_nop":
            self.states = int(self.ops[0], 0) + 1
        w, r = [], []
        if self.valu or self.mfma:
            w = regs_of(self.ops[0])
            for o in self.ops[1:]:
                r += regs_of(o)
            if op.startswith(("v_add_co", "v_addc_co", "v_sub_co")):
                w += regs_of(self.ops[1])
            if op.startswith(("v_fmac", "v_dot2c", "v_pk_fmac")) or self.dpp:
                r += regs_of(self.ops[0])
            if self.perml:
                w += regs_of(self.ops[1])
                r += regs_of(self.ops[0])
            if op.startswith("v_cndmask") and len(self.ops) == 3:
                r.append(("vcc", 0))
            self.srcc = regs_of(self.ops[3]) if (self.dot or self.mfma) and len(self.ops) > 3 else (
                regs_of(self.ops[0]) if op.startswith("v_dot2c") else [])
            self.srcab = []
            for o in self.ops[1:3]:
                self.srcab += regs_of(o)
        elif self.vmem or self.ds:
            loads = ("load" in op and " lds" not in t and "load_lds" not in op) or op.startswith(("ds_read", "ds_bpermute", "ds_swizzle"))
            for i, o in enumerate(self.ops):
                if i == 0 and loads:
                    w += regs_of(o)
                else:
                    r += regs_of(o)
            self.data = []
            if self.store:
                self.data = regs_of(self.ops[0]) if op.startswith("buffer_") else regs_of(self.ops[1])
        self.w, self.r = set(w), set(r)


MFMA_PASSES = {"v_mfma_f32_16x16x32_bf16": 4, "v_mfma_f32_32x32x16_bf16": 8}


def need(p, c):
    n = 0
    if p.valu:
        vw = {x for x in p.w if x[0] == "v"}
        sw = {x for x in p.w if x[0] in ("s", "vcc")}
        if vw & c.r:
            if c.dpp or c.perml:
                n = max(n, 2)
            if c.rdlane:
                n = max(n, 1)
            if p.trans:
                n = max(n, 1)
            if c.mfma:
                n = max(n, 2)
        if p.dot and (vw & (c.r | c.w)):
            same = c.dot and c.op == p.op
            if not (same and not (vw & set(c.srcab))):
                n = max(n, 3)
        if sw & c.r:
            if c.valu:
                n = max(n, 4 if c.rdlane else 2)
            if c.vmem:
                n = max(n, 5)
    if p.vmem and getattr(p, "wide_store", False) and c.valu and (set(p.data) & c.w):
        n = max(n, 2)
    if p.mfma:
        ps = MFMA_PASSES[p.op]
        idx = {4: 0, 8: 1}[ps]
        if c.mfma:
            if p.w & set(c.srcab):
                n = max(n, (8, 12)[idx])
            if p.w & set(c.srcc) and not (set(c.srcc) == p.w and c.op == p.op):
                n = max(n, (6, 10)[idx])
        elif (p.w & (c.r | c.w)):
            n = max(n, (8, 12)[idx])
        if c.valu and (set(p.srcc) & c.w):
            n = max(n, (3, 7)[idx])
    return n


class Asm:
    def __init__(self):
        self.lines = []
        self.hist = []

    def raw(self, s):
        self.lines.append(s)

    def label(self, name):
        self.lines.append(name + ":")

    def __call__(self, text):
        for line in text.strip().split("\n"):
            line = line.strip()
            if not line or line.startswith(";"):
                if line:
                    self.lines.append("    " + line)
                continue
            if line.endswith(":"):
                self.lines.append(line)
                continue
            c = Ins(line)
            dist, pad = 0, 0
            for p in reversed(self.hist):
                pad = max(pad, need(p, c) - dist)
                dist += p.states
                if dist >= 20:
                    break
            if pad > 0:
                nop = Ins("s_nop %d" % (pad - 1))
                self.lines.append("    " + nop.text)
                self.hist.append(nop)
            self.lines.append("    " + line)
            self.hist.append(c)
            self.hist = self.hist[-24:]

    def text(self):
        return "\n".join(self.lines) + "\n"
```

```python
import sys, struct, math
from asmlib import Asm

NAME = "gated_mix__mha_block_cached__swiglu_ffn__decode"

def f2u(x):
    return struct.unpack("<I", struct.pack("<f", x))[0]

HEADER = open("cdna_kernels/%s.s.ref" % NAME).read().split("; Override launch")[0]

WS_Y, WS_ML, WS_Z = 0, 512 * 1024, 1024 * 1024
WS_STAMP = 2 * 1024 * 1024
QP, QW, OP, ML, OW = 0, 4096, 6144, 10240, 10496
XT, TT, HT = 16384, 24576, 40960
LDS_BYTES = 41472


class Q:
    def __init__(self):
        self.q = []
    def issue(self, tag):
        self.q.append(tag)
    def wait(self, tag):
        idx = max(i for i, t in enumerate(self.q) if t == tag)
        n = len(self.q) - 1 - idx
        self.q = self.q[idx + 1:]
        return n


def gen(D=4, kvflags="nt", wflags="", stamps=False):
    a = Asm()
    NW = 8
    U = 4
    T = 4096 // (NW * 4 * U)
    STEP = NW * U * 1024
    RB = 32
    def kreg(s, u): return RB + 32 * s + 4 * u
    def vreg(s, u): return RB + 32 * s + 16 + 4 * u
    TMP = RB + 32 * max(D, 4)
    NV = TMP + 8
    K1 = NAME + "_kernel"
    a.raw(HEADER.rstrip())
    a.raw("; @launch kernel=%s grid=(256,1,1) block=(%d,1,1) lds=%d" % (K1, (NW + 1) * 64, LDS_BYTES))
    a.raw("; @launch kernel=fin_kernel grid=(128,1,1) block=(64,1,1) lds=0")
    a.raw('.amdgcn_target "amdgcn-amd-amdhsa--gfx950"')
    a.raw(".text")
    a.raw(".globl %s" % K1)
    a.raw(".p2align 8")
    a.raw(".type %s,@function" % K1)
    a.label(K1)
    a(f"""
    s_cmp_ge_u32 s2, 256
    s_cbranch_scc1 L_end
    s_load_dwordx16 s[16:31], s[0:1], 0
    s_load_dwordx2 s[12:13], s[0:1], 96
    s_load_dwordx2 s[14:15], s[0:1], 64
    """)
    if stamps:
        a("s_memrealtime s[70:71]")
    a(f"""
    v_lshrrev_b32 v1, 6, v0
    v_and_b32 v0, 63, v0
    v_readfirstlane_b32 s3, v1
    s_and_b32 s4, s2, 7
    s_lshl_b32 s4, s4, 2
    s_bfe_u32 s5, s2, 0x20003
    s_add_u32 s4, s4, s5          ; h
    s_lshr_b32 s5, s2, 6          ; b
    s_bfe_u32 s6, s2, 0x10005     ; split
    s_lshl_b32 s7, s5, 5
    s_add_u32 s7, s7, s4
    s_lshl_b32 s7, s7, 1
    s_add_u32 s7, s7, s6
    s_lshl_b32 s8, s7, 20         ; kv byte offset
    s_mov_b32 s60, 0xffff0000
    s_mov_b32 s61, 0x{f2u(128 ** -0.5):08x}
    s_mov_b32 s62, 0x{f2u(math.log2(math.e)):08x}
    s_mov_b32 s35, 0x20000
    s_mov_b32 s39, 0x20000
    s_mov_b32 s43, 0x20000
    s_mov_b32 s47, 0x20000
    s_mov_b32 s51, 0x20000
    s_mov_b32 s55, 0x20000
    s_mov_b32 s34, 0x100000
    s_mov_b32 s38, 0x100000
    s_mov_b32 s50, 4096
    s_mov_b32 s54, 0x400000
    s_cmp_eq_u32 s3, {NW}
    s_cbranch_scc1 L_side
    v_lshlrev_b32 v2, 4, v0
    s_lshl_b32 s9, s3, 12
    v_add_u32 v2, s9, v2          ; kv voffset = wave*4096 + lane*16
    v_lshrrev_b32 v5, 4, v0       ; g
    v_and_b32 v6, 15, v0          ; c
    ; x voffset = b*1024 + (64w+16g)*2
    s_lshl_b32 s9, s5, 10
    s_lshl_b32 s10, s3, 7
    s_add_u32 s9, s9, s10
    v_lshlrev_b32 v7, 5, v5
    v_add_u32 v7, s9, v7
    s_lshl_b32 s9, s3, 19
    v_lshlrev_b32 v3, 17, v5
    v_lshl_add_u32 v3, v6, 4, v3
    v_add_u32 v3, s9, v3
    s_lshl_b32 s10, s4, 8         ; h*256
    s_lshl_b32 s11, s4, 17        ; h*128*1024
    s_waitcnt lgkmcnt(0)
    s_add_u32 s32, s18, s8
    s_addc_u32 s33, s19, 0
    s_add_u32 s36, s20, s8
    s_addc_u32 s37, s21, 0
    s_mov_b32 s48, s16
    s_mov_b32 s49, s17
    s_add_u32 s40, s22, s10
    s_addc_u32 s41, s23, 0
    s_sub_u32 s42, 0x400000, s10
    s_add_u32 s44, s24, s11
    s_addc_u32 s45, s25, 0
    s_mov_b32 s46, 0x20000
    s_mov_b32 s52, s12
    s_mov_b32 s53, s13
    s_mov_b32 s56, 0              ; kv soffset
    """)
    q = Q()
    def issueK(s, tag):
        for u in range(U):
            a(f"buffer_load_dwordx4 v[{kreg(s,u)}:{kreg(s,u)+3}], v2, s[32:35], s56 offen offset:{u*1024} {kvflags}")
            q.issue(tag)
    def issueV(s, tag, bump=True):
        for u in range(U):
            a(f"buffer_load_dwordx4 v[{vreg(s,u)}:{vreg(s,u)+3}], v2, s[36:39], s56 offen offset:{u*1024} {kvflags}")
            q.issue(tag)
        if bump:
            a(f"s_add_u32 s56, s56, {STEP}")
    WB = RB + 32 * (max(D, 4) - 2)
    npre = D - 2 if D >= 4 else min(D, 2)
    a(f"buffer_load_dwordx4 v[{TMP}:{TMP+3}], v7, s[48:51], 0 offen")
    a(f"buffer_load_dwordx4 v[{TMP+4}:{TMP+7}], v7, s[48:51], 0 offen offset:16")
    q.issue("x"); q.issue("x")
    issueK(0, "K0"); issueV(0, "V0")
    for i in range(16):
        a(f"s_mov_b32 s57, {i*8192}")
        a(f"buffer_load_dwordx4 v[{WB+4*i}:{WB+4*i+3}], v3, s[40:43], s57 offen {wflags}")
        q.issue("wq%d" % (i // 4))
    for s in range(1, npre):
        issueK(s, f"K{s}"); issueV(s, f"V{s}")
    a(f"""
    ; wo voffset = (l>>3)*16384 + w*128 + (l&7)*16
    v_lshrrev_b32 v4, 3, v0
    v_lshlrev_b32 v4, 14, v4
    v_and_b32 v8, 7, v0
    v_lshl_add_u32 v4, v8, 4, v4
    s_lshl_b32 s9, s3, 7
    v_add_u32 v4, s9, v4
    s_lshl_b32 s9, s3, 9
    v_lshlrev_b32 v1, 5, v6
    v_lshl_add_u32 v1, v5, 3, v1
    v_add_u32 v1, s9, v1
    s_mov_b32 s57, 4096
    s_mov_b32 s58, 8192
    s_mov_b32 s59, 12288
    """)
    for r in range(8):
        a(f"v_mov_b32 v{14+r}, 0")
    tp = 0
    for i in range(16):
        if i % 4 == 0:
            a(f"s_waitcnt vmcnt({q.wait('wq%d' % (i // 4))})")
            if i == 0 and stamps:
                a("s_memrealtime s[72:73]")
        if i % 2 == 0:
            a(f"v_lshlrev_b32 v30, 16, v{TMP + i // 2}")
            a(f"v_and_b32 v31, s60, v{TMP + i // 2}")
        sel = "op_sel_hi:[1,0,1]" if i % 2 == 0 else "op_sel:[0,1,0] op_sel_hi:[1,1,1]"
        for r in range(4):
            t = 22 + 2 * r
            a(f"v_lshlrev_b32 v{t}, 16, v{WB+4*i+r}")
            a(f"v_and_b32 v{t+1}, s60, v{WB+4*i+r}")
        for r in range(4):
            t = 22 + 2 * r
            a(f"v_pk_fma_f32 v[{14+2*r}:{15+2*r}], v[{t}:{t+1}], v[30:31], v[{14+2*r}:{15+2*r}] {sel}")
    for s in range(npre, D):
        issueK(s, f"K{s}"); issueV(s, f"V{s}")

    def rowreduce8(b):
        for j in range(4):
            a(f"v_permlane32_swap_b32 v{b+j}, v{b+4+j}")
        a(f"v_pk_add_f32 v[{b}:{b+1}], v[{b}:{b+1}], v[{b+4}:{b+5}]")
        a(f"v_pk_add_f32 v[{b+2}:{b+3}], v[{b+2}:{b+3}], v[{b+6}:{b+7}]")
        for j in range(2):
            a(f"v_permlane16_swap_b32 v{b+j}, v{b+2+j}")
        a(f"v_pk_add_f32 v[{b}:{b+1}], v[{b}:{b+1}], v[{b+2}:{b+3}]")

    rowreduce8(14)
    a(f"""
    ds_write_b64 v1, v[14:15] offset:{QP}
    v_lshlrev_b32 v7, 3, v0       ; l*8
    s_waitcnt lgkmcnt(0)
    s_barrier
    """)
    for w in range(8):
        a(f"ds_read_b64 v[{14+2*w}:{15+2*w}], v7 offset:{QP + w*512}")
    a(f"""
    s_lshl_b32 s9, s3, 8
    v_lshlrev_b32 v8, 2, v0
    v_add_u32 v8, s9, v8          ; w*256 + l*4
    v_lshlrev_b32 v9, 4, v6
    v_add_u32 v9, s9, v9          ; w*256 + c*16
    s_waitcnt lgkmcnt(0)
    v_pk_add_f32 v[14:15], v[14:15], v[16:17]
    v_pk_add_f32 v[18:19], v[18:19], v[20:21]
    v_pk_add_f32 v[22:23], v[22:23], v[24:25]
    v_pk_add_f32 v[26:27], v[26:27], v[28:29]
    v_pk_add_f32 v[14:15], v[14:15], v[18:19]
    v_pk_add_f32 v[22:23], v[22:23], v[26:27]
    v_pk_add_f32 v[14:15], v[14:15], v[22:23]
    v_cvt_pk_bf16_f32 v14, v14, v15
    ds_write_b32 v8, v14 offset:{QW}
    s_waitcnt lgkmcnt(0)
    ds_read_b128 v[8:11], v9 offset:{QW}
    v_mov_b32 v12, 0xff800000
    v_mov_b32 v13, 0
    """)
    for r in range(8):
        a(f"v_mov_b32 v{14+r}, 0")
    a("s_waitcnt lgkmcnt(0)")
    if stamps:
        a("s_memrealtime s[74:75]")

    wo_regs = []
    def issueWO(regs4):
        for rg in regs4:
            i = len(wo_regs)
            so = ["0", "s57", "s58", "s59"][i // 4]
            a(f"buffer_load_dwordx4 v[{rg}:{rg+3}], v4, s[44:47], {so} offen offset:{(i%4)*1024} {wflags}")
            q.issue("wo")
            wo_regs.append(rg)

    BC = [0, 8, 4, 12]
    def step(t, mode):
        s = t % D
        a(f"s_waitcnt vmcnt({q.wait(f'K{t}')})")
        for u in range(U):
            a(f"v_dot2_f32_bf16 v{22+u}, v{kreg(s,u)}, v8, 0")
        for r in range(1, 4):
            for u in range(U):
                a(f"v_dot2_f32_bf16 v{22+u}, v{kreg(s,u)+r}, v{8+r}, v{22+u}")
        if mode == "kv":
            issueK(s, f"K{t+D}")
        elif mode == "wo":
            issueWO([kreg(s, u) for u in range(U)])
        a(f"""
        v_add_f32_dpp v26, v22, v22 row_ror:8 row_mask:0xf bank_mask:0x3
        v_add_f32_dpp v27, v24, v24 row_ror:8 row_mask:0xf bank_mask:0x3
        v_add_f32_dpp v26, v23, v23 row_ror:8 row_mask:0xf bank_mask:0xc
        v_add_f32_dpp v27, v25, v25 row_ror:8 row_mask:0xf bank_mask:0xc
        v_add_f32_dpp v28, v26, v26 row_half_mirror row_mask:0xf bank_mask:0x5
        v_add_f32_dpp v28, v27, v27 row_half_mirror row_mask:0xf bank_mask:0xa
        v_add_f32_dpp v28, v28, v28 quad_perm:[1,0,3,2] row_mask:0xf bank_mask:0xf
        v_add_f32_dpp v28, v28, v28 quad_perm:[2,3,0,1] row_mask:0xf bank_mask:0xf
        v_cvt_pk_bf16_f32 v28, v28, v28
        v_lshlrev_b32 v28, 16, v28
        v_mul_f32 v28, s61, v28
        v_cvt_pk_bf16_f32 v28, v28, v28
        v_lshlrev_b32 v28, 16, v28
        v_mul_f32 v28, s62, v28
        v_max_f32_dpp v26, v28, v28 row_ror:4 row_mask:0xf bank_mask:0xf
        v_max_f32_dpp v26, v26, v26 row_ror:8 row_mask:0xf bank_mask:0xf
        v_max_f32 v27, v12, v26
        v_sub_f32 v30, v12, v27
        v_sub_f32 v28, v28, v27
        v_exp_f32 v30, v30
        v_exp_f32 v28, v28
        v_mov_b32 v12, v27
        """)
        for r in range(4):
            a(f"v_pk_mul_f32 v[{14+2*r}:{15+2*r}], v[{14+2*r}:{15+2*r}], v[30:31] op_sel_hi:[1,0]")
        a("v_fma_f32 v13, v13, v30, v28")
        for u in range(U):
            a(f"v_mov_b32_dpp v{22+u}, v28 row_newbcast:{BC[u]} row_mask:0xf bank_mask:0xf")
        a(f"s_waitcnt vmcnt({q.wait(f'V{t}')})")
        for u in range(U):
            pp = 22 + (u & ~1)
            sel = "op_sel_hi:[1,0,1]" if u % 2 == 0 else "op_sel:[0,1,0] op_sel_hi:[1,1,1]"
            for r in range(4):
                a(f"v_lshlrev_b32 v{TMP+2*r}, 16, v{vreg(s,u)+r}")
                a(f"v_and_b32 v{TMP+2*r+1}, s60, v{vreg(s,u)+r}")
            for r in range(4):
                a(f"v_pk_fma_f32 v[{14+2*r}:{15+2*r}], v[{TMP+2*r}:{TMP+2*r+1}], v[{pp}:{pp+1}], v[{14+2*r}:{15+2*r}] {sel}")
        if mode == "kv":
            issueV(s, f"V{t+D}")
        elif mode == "wo":
            issueWO([vreg(s, u) for u in range(U)])

    q.q = [x for t in range(D) for x in [f"K{t}"] * U + [f"V{t}"] * U]
    nkv = T - D
    iters = nkv // D
    a(f"s_mov_b32 s63, {iters}")
    a.raw(".p2align 6")
    a.label("L_loop")
    for t in range(D):
        step(t, "kv")
    a(f"""
    s_sub_u32 s63, s63, 1
    s_cmp_lg_u32 s63, 0
    s_cbranch_scc1 L_loop
    """)
    sh = (iters - 1) * D
    q.q = [t[0] + str(int(t[1:]) + sh) for t in q.q]
    for t in range(iters * D, nkv):
        step(t, "kv")
    for t in range(nkv, T):
        step(t, "wo" if len(wo_regs) < 16 else "none")
    if stamps:
        a("s_memrealtime s[76:77]")
    used = set()
    for rg in wo_regs:
        used |= set(range(rg, rg + 4))
    free = [r for r in range(RB, TMP, 32) if r not in used]
    F = free[0]; G = free[1] if len(free) > 1 else None
    assert G is not None
    a(f"""
    v_mov_b32 v26, v12
    v_mov_b32 v27, v12
    v_permlane32_swap_b32 v26, v27
    v_max_f32 v26, v26, v27
    v_mov_b32 v27, v26
    v_permlane16_swap_b32 v26, v27
    v_max_f32 v26, v26, v27        ; Mw
    v_sub_f32 v30, v12, v26
    v_exp_f32 v30, v30
    """)
    for r in range(4):
        a(f"v_pk_mul_f32 v[{14+2*r}:{15+2*r}], v[{14+2*r}:{15+2*r}], v[30:31] op_sel_hi:[1,0]")
    a(f"""
    v_mul_f32 v13, v13, v30
    v_add_f32_dpp v13, v13, v13 row_ror:4 row_mask:0xf bank_mask:0xf
    v_add_f32_dpp v13, v13, v13 row_ror:8 row_mask:0xf bank_mask:0xf
    v_mov_b32 v28, v13
    v_permlane32_swap_b32 v13, v28
    v_add_f32 v13, v13, v28
    v_mov_b32 v28, v13
    v_permlane16_swap_b32 v13, v28
    v_add_f32 v27, v13, v28
    """)
    rowreduce8(14)
    a(f"""
    ds_write_b64 v1, v[14:15] offset:{OP}
    s_lshl_b32 s9, s3, 3
    v_mov_b32 v28, s9
    s_mov_b64 exec, 1
    ds_write_b64 v28, v[26:27] offset:{ML}
    s_mov_b64 exec, -1
    v_mov_b32 v28, 0
    s_waitcnt lgkmcnt(0)
    s_barrier
    """)
    for i in range(4):
        a(f"ds_read_b128 v[{F+4*i}:{F+4*i+3}], v28 offset:{ML + 16*i}")
    for w in range(8):
        a(f"ds_read_b64 v[{F+16+2*w}:{F+17+2*w}], v7 offset:{OP + w*512}")
    a(f"""
    s_lshl_b32 s9, s3, 9
    v_add_u32 v8, s9, v7          ; w*512 + l*8
    v_lshrrev_b32 v9, 3, v0
    v_lshlrev_b32 v9, 6, v9
    v_add_u32 v9, s9, v9          ; w*512 + (l>>3)*64
    s_waitcnt lgkmcnt(8)
    v_max3_f32 v26, v{F}, v{F+2}, v{F+4}
    v_max3_f32 v27, v{F+6}, v{F+8}, v{F+10}
    v_max3_f32 v26, v26, v{F+12}, v{F+14}
    v_max_f32 v26, v26, v27       ; M
    """)
    for w in range(8):
        a(f"v_sub_f32 v{F+2*w}, v{F+2*w}, v26")
    for w in range(8):
        a(f"v_exp_f32 v{F+2*w}, v{F+2*w}")
    a(f"v_mul_f32 v27, v{F}, v{F+1}")
    for w in range(1, 8):
        a(f"v_fmac_f32 v27, v{F+2*w}, v{F+2*w+1}")
    a("s_waitcnt lgkmcnt(0)")
    a(f"v_pk_mul_f32 v[14:15], v[{F+16}:{F+17}], v[{F}:{F+1}] op_sel_hi:[1,0]")
    a(f"v_pk_mul_f32 v[16:17], v[{F+18}:{F+19}], v[{F+2}:{F+3}] op_sel_hi:[1,0]")
    for w in range(2, 8):
        d = 14 + 2 * (w & 1)
        a(f"v_pk_fma_f32 v[{d}:{d+1}], v[{F+16+2*w}:{F+17+2*w}], v[{F+2*w}:{F+2*w+1}], v[{d}:{d+1}] op_sel_hi:[1,0,1]")
    a(f"""
    v_pk_add_f32 v[14:15], v[14:15], v[16:17]
    ds_write_b64 v8, v[14:15] offset:{OW}
    s_waitcnt lgkmcnt(0)
    """)
    for i in range(4):
        a(f"ds_read_b128 v[{G+4*i}:{G+4*i+3}], v9 offset:{OW + 16*i}")
    for r in range(8):
        a(f"v_mov_b32 v{14+r}, 0")
    a(f"""
    s_lshl_b32 s9, s7, 11
    s_lshl_b32 s10, s3, 8
    s_add_u32 s9, s9, s10
    v_and_b32 v10, 7, v0
    v_lshlrev_b32 v10, 5, v10
    v_lshl_add_u32 v10, v5, 3, v10
    v_add_u32 v10, s9, v10
    s_lshl_b32 s9, s7, 3
    s_add_u32 s9, s9, {WS_ML}
    v_mov_b32 v11, s9
    s_waitcnt vmcnt(0) lgkmcnt(0)
    """)
    for i in range(16):
        rg = wo_regs[i]
        pp = G + (i & ~1)
        sel = "op_sel_hi:[1,0,1]" if i % 2 == 0 else "op_sel:[0,1,0] op_sel_hi:[1,1,1]"
        for r in range(4):
            a(f"v_lshlrev_b32 v{TMP+2*r}, 16, v{rg+r}")
            a(f"v_and_b32 v{TMP+2*r+1}, s60, v{rg+r}")
        for r in range(4):
            a(f"v_pk_fma_f32 v[{14+2*r}:{15+2*r}], v[{TMP+2*r}:{TMP+2*r+1}], v[{pp}:{pp+1}], v[{14+2*r}:{15+2*r}] {sel}")
    rowreduce8(14)
    a(f"""
    v_add_f32_dpp v14, v14, v14 row_ror:8 row_mask:0xf bank_mask:0xf
    v_add_f32_dpp v15, v15, v15 row_ror:8 row_mask:0xf bank_mask:0xf
    s_mov_b32 exec_lo, 0x00ff00ff
    s_mov_b32 exec_hi, 0x00ff00ff
    buffer_store_dwordx2 v[14:15], v10, s[52:55], 0 offen
    s_cmp_lg_u32 s3, 0
    s_cbranch_scc1 L_end
    s_mov_b64 exec, 1
    buffer_store_dwordx2 v[26:27], v11, s[52:55], 0 offen
    """)
    if stamps:
        a(f"""
        s_waitcnt vmcnt(0)
        s_memrealtime s[78:79]
        s_getreg_b32 s80, hwreg(HW_REG_XCC_ID)
        s_getreg_b32 s81, hwreg(HW_REG_HW_ID)
        s_waitcnt lgkmcnt(0)
        s_lshl_b32 s9, s2, 6
        s_add_u32 s9, s9, {WS_STAMP}
        v_mov_b32 v11, s9
        """)
        for i in range(12):
            a(f"v_mov_b32 v{32+i}, s{70+i}")
        for i in range(3):
            a(f"buffer_store_dwordx4 v[{32+4*i}:{35+4*i}], v11, s[52:55], 0 offen offset:{16*i}")
    a("""
    L_end:
    s_endpgm
    """)

    a.hist = []
    a.label("L_side")
    SB = 32
    AC = 96
    a(f"""
    s_cmp_ge_u32 s2, 43
    s_cbranch_scc1 L_end
    s_lshl_b32 s10, s2, 6          ; 64*j bytes
    s_lshl_b32 s11, s2, 15         ; 32*j rows * 1024
    v_lshlrev_b32 v2, 4, v0        ; l*16
    v_lshrrev_b32 v5, 2, v0        ; r
    v_and_b32 v6, 3, v0            ; pc
    s_movk_i32 s9, 2752
    v_mul_lo_u32 v3, v5, s9
    v_lshl_add_u32 v3, v6, 4, v3   ; r*2752 + pc*16
    s_waitcnt lgkmcnt(0)
    s_mov_b32 s48, s16
    s_mov_b32 s49, s17
    s_add_u32 s32, s28, s10
    s_addc_u32 s33, s29, 0
    s_sub_u32 s34, {512*2752}, s10
    s_add_u32 s36, s30, s10
    s_addc_u32 s37, s31, 0
    s_mov_b32 s38, s34
    s_add_u32 s40, s14, s11
    s_addc_u32 s41, s15, 0
    s_mov_b32 s42, 32768
    s_mov_b32 s52, s12
    s_mov_b32 s53, s13
    """)
    q = Q()
    for b in range(4):
        a(f"buffer_load_dwordx4 v[{AC+4*b}:{AC+4*b+3}], v2, s[48:51], 0 offen offset:{b*1024}")
        q.issue("x")
    def issueGU(i):
        sl = i % 8
        a(f"s_mov_b32 s57, {i*44032}")
        a(f"buffer_load_dwordx4 v[{SB+8*sl}:{SB+8*sl+3}], v3, s[32:35], s57 offen {wflags}")
        a(f"buffer_load_dwordx4 v[{SB+8*sl+4}:{SB+8*sl+7}], v3, s[36:39], s57 offen {wflags}")
        q.issue(f"g{i}"); q.issue(f"g{i}")
    def issueWD(f):
        sl = f % 16
        a(f"s_mov_b32 s57, {(f//4)*4096}")
        a(f"buffer_load_dwordx4 v[{SB+4*sl}:{SB+4*sl+3}], v2, s[40:43], s57 offen offset:{(f%4)*1024} {wflags}")
        q.issue(f"d{f}")
    for i in range(8):
        issueGU(i)
    a(f"""
    s_barrier
    v_lshlrev_b32 v7, 7, v0        ; l*128
    s_waitcnt vmcnt({q.wait('x')})
    """)
    for e in range(8):
        for b in range(4):
            src = AC + 4 * b + e // 2
            dst = 8 + 4 * (e & 1) + b
            a(f"v_lshlrev_b32 v{dst}, 16, v{src}" if e % 2 == 0 else f"v_and_b32 v{dst}, s60, v{src}")
        a(f"ds_write_b128 v7, v[{8+4*(e&1)}:{11+4*(e&1)}] offset:{XT + e*16}")
    a(f"""
    v_lshlrev_b32 v7, 4, v5        ; r*16
    s_waitcnt lgkmcnt(0)
    """)
    for r in range(64):
        a(f"v_mov_b32 v{AC+r}, 0")
    a(f"ds_read_b128 v[8:11], v7 offset:{XT}")
    for i in range(32):
        xr = 8 + 4 * (i & 1)
        if i + 1 < 32:
            a(f"ds_read_b128 v[{8+4*((i+1)&1)}:{11+4*((i+1)&1)}], v7 offset:{XT + (i+1)*256}")
            a(f"s_waitcnt vmcnt({q.wait(f'g{i}')}) lgkmcnt(1)")
        else:
            a(f"s_waitcnt vmcnt({q.wait(f'g{i}')}) lgkmcnt(0)")
        sl = i % 8
        for mat in range(2):
            for r in range(4):
                a(f"v_lshlrev_b32 v{16+2*r}, 16, v{SB+8*sl+4*mat+r}")
                a(f"v_and_b32 v{17+2*r}, s60, v{SB+8*sl+4*mat+r}")
            for b in range(4):
                pp = xr + (b & ~1)
                sel = "op_sel_hi:[1,0,1]" if b % 2 == 0 else "op_sel:[0,1,0] op_sel_hi:[1,1,1]"
                for r in range(4):
                    d = AC + (mat * 4 + b) * 8 + 2 * r
                    a(f"v_pk_fma_f32 v[{d}:{d+1}], v[{16+2*r}:{17+2*r}], v[{pp}:{pp+1}], v[{d}:{d+1}] {sel}")
        if i + 8 < 32:
            issueGU(i + 8)
        else:
            issueWD(2 * (i - 24)); issueWD(2 * (i - 24) + 1)
    a(f"""
    v_lshlrev_b32 v7, 10, v5
    v_lshl_add_u32 v7, v6, 5, v7   ; r*1024 + pc*32
    """)
    for mb in range(8):
        a(f"ds_write_b128 v7, v[{AC+8*mb}:{AC+8*mb+3}] offset:{TT + mb*128}")
        a(f"ds_write_b128 v7, v[{AC+8*mb+4}:{AC+8*mb+7}] offset:{TT + mb*128 + 16}")
    a(f"""
    v_lshlrev_b32 v7, 3, v0
    s_waitcnt lgkmcnt(0)
    """)
    for mat in range(2):
        for r in range(16):
            d = AC + mat * 32 + 2 * r
            a(f"ds_read_b64 v[{d}:{d+1}], v7 offset:{TT + r*1024 + mat*512}")
    a("s_waitcnt lgkmcnt(0)")
    for mat in range(2):
        n = 16
        while n > 1:
            n //= 2
            for r in range(n):
                d = AC + mat * 32 + 2 * r
                s_ = d + 2 * n
                a(f"v_pk_add_f32 v[{d}:{d+1}], v[{d}:{d+1}], v[{s_}:{s_+1}]")
    Gv, Uv = AC, AC + 32
    a(f"""
    v_cvt_pk_bf16_f32 v8, v{Gv}, v{Gv+1}
    v_cvt_pk_bf16_f32 v9, v{Uv}, v{Uv+1}
    v_lshlrev_b32 v10, 16, v8
    v_and_b32 v11, s60, v8
    v_lshlrev_b32 v12, 16, v9
    v_and_b32 v13, s60, v9
    v_mul_f32 v14, s62, v10
    v_mul_f32 v15, s62, v11
    v_exp_f32 v14, -v14
    v_exp_f32 v15, -v15
    v_add_f32 v14, 1.0, v14
    v_add_f32 v15, 1.0, v15
    v_rcp_f32 v14, v14
    v_rcp_f32 v15, v15
    v_mul_f32 v10, v10, v14
    v_mul_f32 v11, v11, v15
    v_cvt_pk_bf16_f32 v8, v10, v11
    v_lshlrev_b32 v10, 16, v8
    v_and_b32 v11, s60, v8
    v_mul_f32 v10, v10, v12
    v_mul_f32 v11, v11, v13
    v_cvt_pk_bf16_f32 v8, v10, v11
    v_lshlrev_b32 v10, 16, v8
    v_and_b32 v11, s60, v8
    v_and_b32 v7, 15, v0
    v_lshlrev_b32 v7, 5, v7
    v_lshrrev_b32 v8, 4, v0
    v_lshl_add_u32 v7, v8, 2, v7
    ds_write_b32 v7, v10 offset:{HT}
    ds_write_b32 v7, v11 offset:{HT+16}
    v_mov_b32 v7, 0
    s_waitcnt lgkmcnt(0)
    """)
    for r in range(32):
        a(f"v_mov_b32 v{AC+r}, 0")
    a(f"ds_read_b128 v[8:11], v7 offset:{HT}")
    for f in range(32):
        xr = 8 + 4 * (f & 1)
        if f + 1 < 32:
            a(f"ds_read_b128 v[{8+4*((f+1)&1)}:{11+4*((f+1)&1)}], v7 offset:{HT + (f+1)*16}")
            a(f"s_waitcnt vmcnt({q.wait(f'd{f}')}) lgkmcnt(1)")
        else:
            a(f"s_waitcnt vmcnt({q.wait(f'd{f}')}) lgkmcnt(0)")
        sl = f % 16
        for r in range(4):
            a(f"v_lshlrev_b32 v{16+2*r}, 16, v{SB+4*sl+r}")
            a(f"v_and_b32 v{17+2*r}, s60, v{SB+4*sl+r}")
        for b in range(4):
            pp = xr + (b & ~1)
            sel = "op_sel_hi:[1,0,1]" if b % 2 == 0 else "op_sel:[0,1,0] op_sel_hi:[1,1,1]"
            for r in range(4):
                d = AC + b * 8 + 2 * r
                a(f"v_pk_fma_f32 v[{d}:{d+1}], v[{16+2*r}:{17+2*r}], v[{pp}:{pp+1}], v[{d}:{d+1}] {sel}")
        if f + 16 < 32:
            issueWD(f + 16)
    a(f"""
    s_lshl_b32 s9, s2, 13
    s_add_u32 s9, s9, {WS_Z}
    v_lshlrev_b32 v7, 5, v0
    v_add_u32 v7, s9, v7
    s_movk_i32 s57, 4096
    """)
    for b in range(4):
        so = "0" if b < 2 else "s57"
        a(f"buffer_store_dwordx4 v[{AC+8*b}:{AC+8*b+3}], v7, s[52:55], {so} offen offset:{(b&1)*2048}")
        a(f"buffer_store_dwordx4 v[{AC+8*b+4}:{AC+8*b+7}], v7, s[52:55], {so} offen offset:{(b&1)*2048+16}")
    a("s_endpgm")

    a.hist = []
    a.raw(".globl fin_kernel")
    a.raw(".p2align 8")
    a.raw(".type fin_kernel,@function")
    a.label("fin_kernel")
    a(f"""
    s_cmp_ge_u32 s2, 128
    s_cbranch_scc1 L_fend
    s_load_dwordx2 s[8:9], s[0:1], 96     ; ws
    s_load_dwordx2 s[16:17], s[0:1], 0    ; x
    s_load_dwordx2 s[20:21], s[0:1], 72   ; gate_w
    s_load_dwordx2 s[24:25], s[0:1], 80   ; out
    s_lshr_b32 s4, s2, 5          ; b
    s_and_b32 s5, s2, 31
    s_mov_b32 s10, {WS_Z}
    s_mov_b32 s11, 0x20000
    s_mov_b32 s14, {43*8192}
    s_mov_b32 s15, 0x20000
    s_mov_b32 s18, 4096
    s_mov_b32 s19, 0x20000
    s_mov_b32 s22, 1024
    s_mov_b32 s23, 0x20000
    s_mov_b32 s26, 4096
    s_mov_b32 s27, 0x20000
    s_mov_b32 s60, 0xffff0000
    s_mov_b32 s62, 0x{f2u(math.log2(math.e)):08x}
    v_lshrrev_b32 v1, 2, v0       ; j
    v_and_b32 v2, 3, v0           ; cq
    v_lshlrev_b32 v2, 4, v2
    s_lshl_b32 s6, s5, 6
    v_add_u32 v2, s6, v2          ; col0*4
    s_lshl_b32 s6, s4, 17
    v_lshl_add_u32 v3, v1, 12, v2
    v_add_u32 v3, s6, v3
    s_lshl_b32 s6, s4, 9
    s_add_u32 s6, s6, {WS_ML}
    v_lshlrev_b32 v4, 4, v1
    v_add_u32 v4, s6, v4
    s_lshl_b32 s6, s4, 11
    v_lshl_add_u32 v5, v1, 13, v2
    v_add_u32 v5, s6, v5
    v_lshlrev_b32 v6, 4, v0       ; l*16
    s_lshl_b32 s7, s4, 10
    s_mov_b32 s28, 0x10000
    s_mov_b32 s29, 0x20000
    s_mov_b32 s30, 0x40000
    s_waitcnt lgkmcnt(0)
    s_add_u32 s12, s8, {WS_Z}
    s_addc_u32 s13, s9, 0
    buffer_load_dwordx4 v[8:11], v4, s[8:11], 0 offen
    buffer_load_dwordx4 v[12:15], v4, s[8:11], 0 offen offset:256
    buffer_load_dwordx4 v[16:19], v3, s[8:11], 0 offen
    buffer_load_dwordx4 v[20:23], v3, s[8:11], 0 offen offset:2048
    buffer_load_dwordx4 v[24:27], v3, s[8:11], s28 offen
    buffer_load_dwordx4 v[28:31], v3, s[8:11], s28 offen offset:2048
    buffer_load_dwordx4 v[32:35], v5, s[12:15], 0 offen
    buffer_load_dwordx4 v[36:39], v5, s[12:15], s29 offen
    buffer_load_dwordx4 v[40:43], v5, s[12:15], s30 offen
    buffer_load_dwordx4 v[44:47], v6, s[16:19], s7 offen
    buffer_load_dwordx4 v[48:51], v6, s[20:23], 0 offen
    s_waitcnt vmcnt(9)
    """)
    for hb in (8, 12):
        a(f"""
        v_max_f32 v52, v{hb}, v{hb+2}
        v_sub_f32 v{hb}, v{hb}, v52
        v_sub_f32 v{hb+2}, v{hb+2}, v52
        v_exp_f32 v{hb}, v{hb}
        v_exp_f32 v{hb+2}, v{hb+2}
        v_mul_f32 v52, v{hb}, v{hb+1}
        v_fmac_f32 v52, v{hb+2}, v{hb+3}
        v_rcp_f32 v52, v52
        v_mul_f32 v{hb}, v{hb}, v52
        v_mul_f32 v{hb+2}, v{hb+2}, v52
        """)
    a("s_waitcnt vmcnt(5)")
    for h in range(2):
        a(f"v_pk_mul_f32 v[{16+2*h}:{17+2*h}], v[{16+2*h}:{17+2*h}], v[8:9] op_sel_hi:[1,0]")
    for src, w in ((20, 10), (24, 12), (28, 14)):
        for h in range(2):
            a(f"v_pk_fma_f32 v[{16+2*h}:{17+2*h}], v[{src+2*h}:{src+1+2*h}], v[{w}:{w+1}], v[{16+2*h}:{17+2*h}] op_sel_hi:[1,0,1]")
    a("s_waitcnt vmcnt(2)")
    for h in range(2):
        a(f"v_pk_add_f32 v[{20+2*h}:{21+2*h}], v[{32+2*h}:{33+2*h}], v[{36+2*h}:{37+2*h}]")
    for h in range(2):
        a(f"v_pk_add_f32 v[{20+2*h}:{21+2*h}], v[{20+2*h}:{21+2*h}], v[{40+2*h}:{41+2*h}]")
    a("s_waitcnt vmcnt(0)")
    for r in range(4):
        a(f"""
        v_lshlrev_b32 v26, 16, v{44+r}
        v_and_b32 v27, s60, v{44+r}
        v_lshlrev_b32 v28, 16, v{48+r}
        v_and_b32 v29, s60, v{48+r}
        v_pk_mul_f32 v[26:27], v[26:27], v[28:29]
        v_cvt_pk_bf16_f32 v26, v26, v27
        v_lshlrev_b32 v28, 16, v26
        v_and_b32 v29, s60, v26
        """)
        if r == 0:
            a("v_add_f32 v24, v28, v29")
        else:
            a("v_add_f32 v24, v24, v28")
            a("v_add_f32 v24, v24, v29")
    a("v_add_f32_dpp v24, v24, v24 quad_perm:[1,0,3,2] row_mask:0xf bank_mask:0xf")
    a("v_add_f32_dpp v24, v24, v24 quad_perm:[2,3,0,1] row_mask:0xf bank_mask:0xf")
    for r in range(16, 25):
        a(f"v_add_f32_dpp v{r}, v{r}, v{r} row_ror:4 row_mask:0xf bank_mask:0xf")
    for r in range(16, 25):
        a(f"v_add_f32_dpp v{r}, v{r}, v{r} row_ror:8 row_mask:0xf bank_mask:0xf")
    for sw in ("v_permlane16_swap_b32", "v_permlane32_swap_b32"):
        for r in range(16, 25):
            a(f"v_mov_b32 v{r+16}, v{r}")
        for r in range(16, 25):
            a(f"{sw} v{r}, v{r+16}")
        for r in range(16, 25):
            a(f"v_add_f32 v{r}, v{r}, v{r+16}")
    a(f"""
    v_cvt_pk_bf16_f32 v24, v24, v24
    v_lshlrev_b32 v24, 16, v24
    v_mul_f32 v24, s62, v24
    v_exp_f32 v24, -v24
    v_add_f32 v24, 1.0, v24
    v_rcp_f32 v24, v24
    v_cvt_pk_bf16_f32 v24, v24, v24
    v_lshlrev_b32 v24, 16, v24      ; g
    v_sub_f32 v26, 1.0, v24
    v_cvt_pk_bf16_f32 v26, v26, v26
    v_lshlrev_b32 v26, 16, v26      ; 1-g
    """)
    for h in range(2):
        for (src, w) in ((16, 24), (20, 26)):
            d = src + 2 * h
            a(f"""
            v_cvt_pk_bf16_f32 v30, v{d}, v{d+1}
            v_lshlrev_b32 v{d}, 16, v30
            v_and_b32 v{d+1}, s60, v30
            v_pk_mul_f32 v[{d}:{d+1}], v[{d}:{d+1}], v[{w}:{w+1}] op_sel_hi:[1,0]
            v_cvt_pk_bf16_f32 v30, v{d}, v{d+1}
            v_lshlrev_b32 v{d}, 16, v30
            v_and_b32 v{d+1}, s60, v30
            """)
        a(f"v_pk_add_f32 v[{16+2*h}:{17+2*h}], v[{16+2*h}:{17+2*h}], v[{20+2*h}:{21+2*h}]")
        a(f"v_cvt_pk_bf16_f32 v{32+h}, v{16+2*h}, v{17+2*h}")
    a(f"""
    v_lshrrev_b32 v2, 1, v2
    s_mov_b64 exec, 15
    buffer_store_dwordx2 v[32:33], v2, s[24:27], s7 offen
    L_fend:
    s_endpgm
    """)
    a.raw('.section .rodata,"a"')
    for name, nv, ns in ((K1, NV, 96), ("fin_kernel", 56, 64)):
        a.raw(f""".p2align 6
.amdhsa_kernel {name}
  .amdhsa_next_free_vgpr {nv}
  .amdhsa_next_free_sgpr {ns}
  .amdhsa_accum_offset {(nv + 3) // 4 * 4}
  .amdhsa_group_segment_fixed_size 0
  .amdhsa_kernarg_size 104
  .amdhsa_user_sgpr_count 2
  .amdhsa_user_sgpr_kernarg_segment_ptr 1
  .amdhsa_system_sgpr_workgroup_id_x 1
.end_amdhsa_kernel""")
    return a.text()


if __name__ == "__main__":
    import argparse
    ap = argparse.ArgumentParser()
    ap.add_argument("-o", default="cdna_kernels/%s.s" % NAME)
    ap.add_argument("-D", type=int, default=4)
    ap.add_argument("--kv", default="nt")
    ap.add_argument("--w", default="")
    ap.add_argument("--stamps", action="store_true")
    x = ap.parse_args()
    open(x.o, "w").write(gen(x.D, x.kv, x.w, x.stamps))
```

```python
import sys, struct, math
from asmlib import Asm

NAME = "gated_mix__mha_block_cached__swiglu_ffn__decode"

def f2u(x):
    return struct.unpack("<I", struct.pack("<f", x))[0]

HEADER = open("cdna_kernels/%s.s.ref" % NAME).read().split("; Override launch")[0]

WS_Y, WS_ML, WS_Z = 0, 512 * 1024, 1024 * 1024
WS_STAMP = 2 * 1024 * 1024
QP, QW, OP, ML, OW = 0, 4096, 6144, 10240, 10496
XT, TT, HT = 16384, 24576, 40960
LDS_BYTES = 41472


class Q:
    def __init__(self):
        self.q = []
    def issue(self, tag):
        self.q.append(tag)
    def wait(self, tag):
        idx = max(i for i, t in enumerate(self.q) if t == tag)
        n = len(self.q) - 1 - idx
        self.q = self.q[idx + 1:]
        return n


def gen(D=4, kvflags="nt", wflags="", stamps=False):
    a = Asm()
    NW = 8
    U = 4
    T = 4096 // (NW * 4 * U)
    STEP = NW * U * 1024
    RB = 32
    def kreg(s, u): return RB + 32 * s + 4 * u
    def vreg(s, u): return RB + 32 * s + 16 + 4 * u
    TMP = RB + 32 * max(D, 4)
    NV = TMP + 8
    K1 = NAME + "_kernel"
    a.raw(HEADER.rstrip())
    a.raw("; @launch kernel=%s grid=(256,1,1) block=(%d,1,1) lds=%d" % (K1, (NW + 1) * 64, LDS_BYTES))
    a.raw("; @launch kernel=fin_kernel grid=(128,1,1) block=(64,1,1) lds=0")
    a.raw('.amdgcn_target "amdgcn-amd-amdhsa--gfx950"')
    a.raw(".text")
    a.raw(".globl %s" % K1)
    a.raw(".p2align 8")
    a.raw(".type %s,@function" % K1)
    a.label(K1)
    a(f"""
    s_cmp_ge_u32 s2, 256
    s_cbranch_scc1 L_end
    s_load_dwordx16 s[16:31], s[0:1], 0
    s_load_dwordx2 s[12:13], s[0:1], 96
    s_load_dwordx2 s[14:15], s[0:1], 64
    """)
    if stamps:
        a("s_memrealtime s[70:71]")
    a(f"""
    v_lshrrev_b32 v1, 6, v0
    v_and_b32 v0, 63, v0
    v_readfirstlane_b32 s3, v1
    s_and_b32 s4, s2, 31          ; h
    s_lshr_b32 s5, s2, 6          ; b
    s_bfe_u32 s6, s2, 0x10005     ; split
    s_lshl_b32 s7, s5, 5
    s_add_u32 s7, s7, s4
    s_lshl_b32 s7, s7, 1
    s_add_u32 s7, s7, s6
    s_lshl_b32 s8, s7, 20         ; kv byte offset
    s_mov_b32 s60, 0xffff0000
    s_mov_b32 s61, 0x{f2u(128 ** -0.5):08x}
    s_mov_b32 s62, 0x{f2u(math.log2(math.e)):08x}
    s_mov_b32 s35, 0x20000
    s_mov_b32 s39, 0x20000
    s_mov_b32 s43, 0x20000
    s_mov_b32 s47, 0x20000
    s_mov_b32 s51, 0x20000
    s_mov_b32 s55, 0x20000
    s_mov_b32 s34, 0x100000
    s_mov_b32 s38, 0x100000
    s_mov_b32 s50, 4096
    s_mov_b32 s54, 0x400000
    s_cmp_eq_u32 s3, {NW}
    s_cbranch_scc1 L_side
    v_lshlrev_b32 v2, 4, v0
    s_lshl_b32 s9, s3, 12
    v_add_u32 v2, s9, v2          ; kv voffset = wave*4096 + lane*16
    v_lshrrev_b32 v5, 4, v0       ; g
    v_and_b32 v6, 15, v0          ; c
    ; x voffset = b*1024 + (64w+16g)*2
    s_lshl_b32 s9, s5, 10
    s_lshl_b32 s10, s3, 7
    s_add_u32 s9, s9, s10
    v_lshlrev_b32 v7, 5, v5
    v_add_u32 v7, s9, v7
    s_lshl_b32 s9, s3, 19
    v_lshlrev_b32 v3, 17, v5
    v_lshl_add_u32 v3, v6, 4, v3
    v_add_u32 v3, s9, v3
    s_lshl_b32 s10, s4, 8         ; h*256
    s_lshl_b32 s11, s4, 17        ; h*128*1024
    s_waitcnt lgkmcnt(0)
    s_add_u32 s32, s18, s8
    s_addc_u32 s33, s19, 0
    s_add_u32 s36, s20, s8
    s_addc_u32 s37, s21, 0
    s_mov_b32 s48, s16
    s_mov_b32 s49, s17
    s_add_u32 s40, s22, s10
    s_addc_u32 s41, s23, 0
    s_sub_u32 s42, 0x400000, s10
    s_add_u32 s44, s24, s11
    s_addc_u32 s45, s25, 0
    s_mov_b32 s46, 0x20000
    s_mov_b32 s52, s12
    s_mov_b32 s53, s13
    s_mov_b32 s56, 0              ; kv soffset
    """)
    q = Q()
    def issueK(s, tag):
        for u in range(U):
            a(f"buffer_load_dwordx4 v[{kreg(s,u)}:{kreg(s,u)+3}], v2, s[32:35], s56 offen offset:{u*1024} {kvflags}")
            q.issue(tag)
    def issueV(s, tag, bump=True):
        for u in range(U):
            a(f"buffer_load_dwordx4 v[{vreg(s,u)}:{vreg(s,u)+3}], v2, s[36:39], s56 offen offset:{u*1024} {kvflags}")
            q.issue(tag)
        if bump:
            a(f"s_add_u32 s56, s56, {STEP}")
    WB = RB + 32 * (max(D, 4) - 2)
    npre = D - 2 if D >= 4 else min(D, 2)
    a(f"buffer_load_dwordx4 v[{TMP}:{TMP+3}], v7, s[48:51], 0 offen")
    a(f"buffer_load_dwordx4 v[{TMP+4}:{TMP+7}], v7, s[48:51], 0 offen offset:16")
    q.issue("x"); q.issue("x")
    issueK(0, "K0"); issueV(0, "V0")
    for i in range(16):
        a(f"s_mov_b32 s57, {i*8192}")
        a(f"buffer_load_dwordx4 v[{WB+4*i}:{WB+4*i+3}], v3, s[40:43], s57 offen {wflags}")
        q.issue("wq%d" % (i // 4))
    for s in range(1, npre):
        issueK(s, f"K{s}"); issueV(s, f"V{s}")
    a(f"""
    ; wo voffset = (l>>3)*16384 + w*128 + (l&7)*16
    v_lshrrev_b32 v4, 3, v0
    v_lshlrev_b32 v4, 14, v4
    v_and_b32 v8, 7, v0
    v_lshl_add_u32 v4, v8, 4, v4
    s_lshl_b32 s9, s3, 7
    v_add_u32 v4, s9, v4
    s_lshl_b32 s9, s3, 9
    v_lshlrev_b32 v1, 5, v6
    v_lshl_add_u32 v1, v5, 3, v1
    v_add_u32 v1, s9, v1
    s_mov_b32 s57, 4096
    s_mov_b32 s58, 8192
    s_mov_b32 s59, 12288
    """)
    for r in range(8):
        a(f"v_mov_b32 v{14+r}, 0")
    tp = 0
    for i in range(16):
        if i % 4 == 0:
            a(f"s_waitcnt vmcnt({q.wait('wq%d' % (i // 4))})")
            if i == 0 and stamps:
                a("s_memrealtime s[72:73]")
        if i % 2 == 0:
            a(f"v_lshlrev_b32 v30, 16, v{TMP + i // 2}")
            a(f"v_and_b32 v31, s60, v{TMP + i // 2}")
        sel = "op_sel_hi:[1,0,1]" if i % 2 == 0 else "op_sel:[0,1,0] op_sel_hi:[1,1,1]"
        for r in range(4):
            t = 22 + 2 * r
            a(f"v_lshlrev_b32 v{t}, 16, v{WB+4*i+r}")
            a(f"v_and_b32 v{t+1}, s60, v{WB+4*i+r}")
        for r in range(4):
            t = 22 + 2 * r
            a(f"v_pk_fma_f32 v[{14+2*r}:{15+2*r}], v[{t}:{t+1}], v[30:31], v[{14+2*r}:{15+2*r}] {sel}")
    for s in range(npre, D):
        issueK(s, f"K{s}"); issueV(s, f"V{s}")

    def rowreduce8(b):
        for j in range(4):
            a(f"v_permlane32_swap_b32 v{b+j}, v{b+4+j}")
        a(f"v_pk_add_f32 v[{b}:{b+1}], v[{b}:{b+1}], v[{b+4}:{b+5}]")
        a(f"v_pk_add_f32 v[{b+2}:{b+3}], v[{b+2}:{b+3}], v[{b+6}:{b+7}]")
        for j in range(2):
            a(f"v_permlane16_swap_b32 v{b+j}, v{b+2+j}")
        a(f"v_pk_add_f32 v[{b}:{b+1}], v[{b}:{b+1}], v[{b+2}:{b+3}]")

    rowreduce8(14)
    a(f"""
    ds_write_b64 v1, v[14:15] offset:{QP}
    v_lshlrev_b32 v7, 3, v0       ; l*8
    s_waitcnt lgkmcnt(0)
    s_barrier
    """)
    for w in range(8):
        a(f"ds_read_b64 v[{14+2*w}:{15+2*w}], v7 offset:{QP + w*512}")
    a(f"""
    s_lshl_b32 s9, s3, 8
    v_lshlrev_b32 v8, 2, v0
    v_add_u32 v8, s9, v8          ; w*256 + l*4
    v_lshlrev_b32 v9, 4, v6
    v_add_u32 v9, s9, v9          ; w*256 + c*16
    s_waitcnt lgkmcnt(0)
    v_pk_add_f32 v[14:15], v[14:15], v[16:17]
    v_pk_add_f32 v[18:19], v[18:19], v[20:21]
    v_pk_add_f32 v[22:23], v[22:23], v[24:25]
    v_pk_add_f32 v[26:27], v[26:27], v[28:29]
    v_pk_add_f32 v[14:15], v[14:15], v[18:19]
    v_pk_add_f32 v[22:23], v[22:23], v[26:27]
    v_pk_add_f32 v[14:15], v[14:15], v[22:23]
    v_cvt_pk_bf16_f32 v14, v14, v15
    ds_write_b32 v8, v14 offset:{QW}
    s_waitcnt lgkmcnt(0)
    ds_read_b128 v[8:11], v9 offset:{QW}
    v_mov_b32 v12, 0xff800000
    v_mov_b32 v13, 0
    """)
    for r in range(8):
        a(f"v_mov_b32 v{14+r}, 0")
    a("s_waitcnt lgkmcnt(0)")
    if stamps:
        a("s_memrealtime s[74:75]")

    wo_regs = []
    def issueWO(regs4):
        for rg in regs4:
            i = len(wo_regs)
            so = ["0", "s57", "s58", "s59"][i // 4]
            a(f"buffer_load_dwordx4 v[{rg}:{rg+3}], v4, s[44:47], {so} offen offset:{(i%4)*1024} {wflags}")
            q.issue("wo")
            wo_regs.append(rg)

    BC = [0, 8, 4, 12]
    def step(t, mode):
        s = t % D
        a(f"s_waitcnt vmcnt({q.wait(f'K{t}')})")
        for u in range(U):
            a(f"v_dot2_f32_bf16 v{22+u}, v{kreg(s,u)}, v8, 0")
        for r in range(1, 4):
            for u in range(U):
                a(f"v_dot2_f32_bf16 v{22+u}, v{kreg(s,u)+r}, v{8+r}, v{22+u}")
        if mode == "kv":
            issueK(s, f"K{t+D}")
        elif mode == "wo":
            issueWO([kreg(s, u) for u in range(U)])
        a(f"""
        v_add_f32_dpp v26, v22, v22 row_ror:8 row_mask:0xf bank_mask:0x3
        v_add_f32_dpp v27, v24, v24 row_ror:8 row_mask:0xf bank_mask:0x3
        v_add_f32_dpp v26, v23, v23 row_ror:8 row_mask:0xf bank_mask:0xc
        v_add_f32_dpp v27, v25, v25 row_ror:8 row_mask:0xf bank_mask:0xc
        v_add_f32_dpp v28, v26, v26 row_half_mirror row_mask:0xf bank_mask:0x5
        v_add_f32_dpp v28, v27, v27 row_half_mirror row_mask:0xf bank_mask:0xa
        v_add_f32_dpp v28, v28, v28 quad_perm:[1,0,3,2] row_mask:0xf bank_mask:0xf
        v_add_f32_dpp v28, v28, v28 quad_perm:[2,3,0,1] row_mask:0xf bank_mask:0xf
        v_cvt_pk_bf16_f32 v28, v28, v28
        v_lshlrev_b32 v28, 16, v28
        v_mul_f32 v28, s61, v28
        v_cvt_pk_bf16_f32 v28, v28, v28
        v_lshlrev_b32 v28, 16, v28
        v_mul_f32 v28, s62, v28
        v_max_f32_dpp v26, v28, v28 row_ror:4 row_mask:0xf bank_mask:0xf
        v_max_f32_dpp v26, v26, v26 row_ror:8 row_mask:0xf bank_mask:0xf
        v_max_f32 v27, v12, v26
        v_sub_f32 v30, v12, v27
        v_sub_f32 v28, v28, v27
        v_exp_f32 v30, v30
        v_exp_f32 v28, v28
        v_mov_b32 v12, v27
        """)
        for r in range(4):
            a(f"v_pk_mul_f32 v[{14+2*r}:{15+2*r}], v[{14+2*r}:{15+2*r}], v[30:31] op_sel_hi:[1,0]")
        a("v_fma_f32 v13, v13, v30, v28")
        for u in range(U):
            a(f"v_mov_b32_dpp v{22+u}, v28 row_newbcast:{BC[u]} row_mask:0xf bank_mask:0xf")
        a(f"s_waitcnt vmcnt({q.wait(f'V{t}')})")
        for u in range(U):
            pp = 22 + (u & ~1)
            sel = "op_sel_hi:[1,0,1]" if u % 2 == 0 else "op_sel:[0,1,0] op_sel_hi:[1,1,1]"
            for r in range(4):
                a(f"v_lshlrev_b32 v{TMP+2*r}, 16, v{vreg(s,u)+r}")
                a(f"v_and_b32 v{TMP+2*r+1}, s60, v{vreg(s,u)+r}")
            for r in range(4):
                a(f"v_pk_fma_f32 v[{14+2*r}:{15+2*r}], v[{TMP+2*r}:{TMP+2*r+1}], v[{pp}:{pp+1}], v[{14+2*r}:{15+2*r}] {sel}")
        if mode == "kv":
            issueV(s, f"V{t+D}")
        elif mode == "wo":
            issueWO([vreg(s, u) for u in range(U)])

    q.q = [x for t in range(D) for x in [f"K{t}"] * U + [f"V{t}"] * U]
    nkv = T - D
    iters = nkv // D
    a(f"s_mov_b32 s63, {iters}")
    a.raw(".p2align 6")
    a.label("L_loop")
    for t in range(D):
        step(t, "kv")
    a(f"""
    s_sub_u32 s63, s63, 1
    s_cmp_lg_u32 s63, 0
    s_cbranch_scc1 L_loop
    """)
    sh = (iters - 1) * D
    q.q = [t[0] + str(int(t[1:]) + sh) for t in q.q]
    for t in range(iters * D, nkv):
        step(t, "kv")
    for t in range(nkv, T):
        step(t, "wo" if len(wo_regs) < 16 else "none")
    if stamps:
        a("s_memrealtime s[76:77]")
    used = set()
    for rg in wo_regs:
        used |= set(range(rg, rg + 4))
    free = [r for r in range(RB, TMP, 32) if r not in used]
    F = free[0]; G = free[1] if len(free) > 1 else None
    assert G is not None
    a(f"""
    v_mov_b32 v26, v12
    v_mov_b32 v27, v12
    v_permlane32_swap_b32 v26, v27
    v_max_f32 v26, v26, v27
    v_mov_b32 v27, v26
    v_permlane16_swap_b32 v26, v27
    v_max_f32 v26, v26, v27        ; Mw
    v_sub_f32 v30, v12, v26
    v_exp_f32 v30, v30
    """)
    for r in range(4):
        a(f"v_pk_mul_f32 v[{14+2*r}:{15+2*r}], v[{14+2*r}:{15+2*r}], v[30:31] op_sel_hi:[1,0]")
    a(f"""
    v_mul_f32 v13, v13, v30
    v_add_f32_dpp v13, v13, v13 row_ror:4 row_mask:0xf bank_mask:0xf
    v_add_f32_dpp v13, v13, v13 row_ror:8 row_mask:0xf bank_mask:0xf
    v_mov_b32 v28, v13
    v_permlane32_swap_b32 v13, v28
    v_add_f32 v13, v13, v28
    v_mov_b32 v28, v13
    v_permlane16_swap_b32 v13, v28
    v_add_f32 v27, v13, v28
    """)
    rowreduce8(14)
    a(f"""
    ds_write_b64 v1, v[14:15] offset:{OP}
    s_lshl_b32 s9, s3, 3
    v_mov_b32 v28, s9
    s_mov_b64 exec, 1
    ds_write_b64 v28, v[26:27] offset:{ML}
    s_mov_b64 exec, -1
    v_mov_b32 v28, 0
    s_waitcnt lgkmcnt(0)
    s_barrier
    """)
    for i in range(4):
        a(f"ds_read_b128 v[{F+4*i}:{F+4*i+3}], v28 offset:{ML + 16*i}")
    for w in range(8):
        a(f"ds_read_b64 v[{F+16+2*w}:{F+17+2*w}], v7 offset:{OP + w*512}")
    a(f"""
    s_lshl_b32 s9, s3, 9
    v_add_u32 v8, s9, v7          ; w*512 + l*8
    v_lshrrev_b32 v9, 3, v0
    v_lshlrev_b32 v9, 6, v9
    v_add_u32 v9, s9, v9          ; w*512 + (l>>3)*64
    s_waitcnt lgkmcnt(8)
    v_max3_f32 v26, v{F}, v{F+2}, v{F+4}
    v_max3_f32 v27, v{F+6}, v{F+8}, v{F+10}
    v_max3_f32 v26, v26, v{F+12}, v{F+14}
    v_max_f32 v26, v26, v27       ; M
    """)
    for w in range(8):
        a(f"v_sub_f32 v{F+2*w}, v{F+2*w}, v26")
    for w in range(8):
        a(f"v_exp_f32 v{F+2*w}, v{F+2*w}")
    a(f"v_mul_f32 v27, v{F}, v{F+1}")
    for w in range(1, 8):
        a(f"v_fmac_f32 v27, v{F+2*w}, v{F+2*w+1}")
    a("s_waitcnt lgkmcnt(0)")
    a(f"v_pk_mul_f32 v[14:15], v[{F+16}:{F+17}], v[{F}:{F+1}] op_sel_hi:[1,0]")
    a(f"v_pk_mul_f32 v[16:17], v[{F+18}:{F+19}], v[{F+2}:{F+3}] op_sel_hi:[1,0]")
    for w in range(2, 8):
        d = 14 + 2 * (w & 1)
        a(f"v_pk_fma_f32 v[{d}:{d+1}], v[{F+16+2*w}:{F+17+2*w}], v[{F+2*w}:{F+2*w+1}], v[{d}:{d+1}] op_sel_hi:[1,0,1]")
    a(f"""
    v_pk_add_f32 v[14:15], v[14:15], v[16:17]
    ds_write_b64 v8, v[14:15] offset:{OW}
    s_waitcnt lgkmcnt(0)
    """)
    for i in range(4):
        a(f"ds_read_b128 v[{G+4*i}:{G+4*i+3}], v9 offset:{OW + 16*i}")
    for r in range(8):
        a(f"v_mov_b32 v{14+r}, 0")
    a(f"""
    s_lshl_b32 s9, s7, 11
    s_lshl_b32 s10, s3, 8
    s_add_u32 s9, s9, s10
    v_and_b32 v10, 7, v0
    v_lshlrev_b32 v10, 5, v10
    v_lshl_add_u32 v10, v5, 3, v10
    v_add_u32 v10, s9, v10
    s_lshl_b32 s9, s7, 3
    s_add_u32 s9, s9, {WS_ML}
    v_mov_b32 v11, s9
    s_waitcnt vmcnt(0) lgkmcnt(0)
    """)
    for i in range(16):
        rg = wo_regs[i]
        pp = G + (i & ~1)
        sel = "op_sel_hi:[1,0,1]" if i % 2 == 0 else "op_sel:[0,1,0] op_sel_hi:[1,1,1]"
        for r in range(4):
            a(f"v_lshlrev_b32 v{TMP+2*r}, 16, v{rg+r}")
            a(f"v_and_b32 v{TMP+2*r+1}, s60, v{rg+r}")
        for r in range(4):
            a(f"v_pk_fma_f32 v[{14+2*r}:{15+2*r}], v[{TMP+2*r}:{TMP+2*r+1}], v[{pp}:{pp+1}], v[{14+2*r}:{15+2*r}] {sel}")
    rowreduce8(14)
    a(f"""
    v_add_f32_dpp v14, v14, v14 row_ror:8 row_mask:0xf bank_mask:0xf
    v_add_f32_dpp v15, v15, v15 row_ror:8 row_mask:0xf bank_mask:0xf
    s_mov_b32 exec_lo, 0x00ff00ff
    s_mov_b32 exec_hi, 0x00ff00ff
    buffer_store_dwordx2 v[14:15], v10, s[52:55], 0 offen
    s_cmp_lg_u32 s3, 0
    s_cbranch_scc1 L_end
    s_mov_b64 exec, 1
    buffer_store_dwordx2 v[26:27], v11, s[52:55], 0 offen
    """)
    if stamps:
        a(f"""
        s_waitcnt vmcnt(0)
        s_memrealtime s[78:79]
        s_getreg_b32 s80, hwreg(HW_REG_XCC_ID)
        s_getreg_b32 s81, hwreg(HW_REG_HW_ID)
        s_waitcnt lgkmcnt(0)
        s_lshl_b32 s9, s2, 6
        s_add_u32 s9, s9, {WS_STAMP}
        v_mov_b32 v11, s9
        """)
        for i in range(12):
            a(f"v_mov_b32 v{32+i}, s{70+i}")
        for i in range(3):
            a(f"buffer_store_dwordx4 v[{32+4*i}:{35+4*i}], v11, s[52:55], 0 offen offset:{16*i}")
    a("""
    L_end:
    s_endpgm
    """)

    a.hist = []
    a.label("L_side")
    SB = 32
    AC = 96
    a(f"""
    s_cmp_ge_u32 s2, 43
    s_cbranch_scc1 L_end
    s_setprio 3
    s_lshl_b32 s10, s2, 6          ; 64*j bytes
    s_lshl_b32 s11, s2, 15         ; 32*j rows * 1024
    v_lshlrev_b32 v2, 4, v0        ; l*16
    v_lshrrev_b32 v5, 2, v0        ; r
    v_and_b32 v6, 3, v0            ; pc
    s_movk_i32 s9, 2752
    v_mul_lo_u32 v3, v5, s9
    v_lshl_add_u32 v3, v6, 4, v3   ; r*2752 + pc*16
    s_waitcnt lgkmcnt(0)
    s_mov_b32 s48, s16
    s_mov_b32 s49, s17
    s_add_u32 s32, s28, s10
    s_addc_u32 s33, s29, 0
    s_sub_u32 s34, {512*2752}, s10
    s_add_u32 s36, s30, s10
    s_addc_u32 s37, s31, 0
    s_mov_b32 s38, s34
    s_add_u32 s40, s14, s11
    s_addc_u32 s41, s15, 0
    s_mov_b32 s42, 32768
    s_mov_b32 s52, s12
    s_mov_b32 s53, s13
    """)
    q = Q()
    for b in range(4):
        a(f"buffer_load_dwordx4 v[{AC+4*b}:{AC+4*b+3}], v2, s[48:51], 0 offen offset:{b*1024}")
        q.issue("x")
    def issueGU(i):
        sl = i % 8
        a(f"s_mov_b32 s57, {i*44032}")
        a(f"buffer_load_dwordx4 v[{SB+8*sl}:{SB+8*sl+3}], v3, s[32:35], s57 offen {wflags}")
        a(f"buffer_load_dwordx4 v[{SB+8*sl+4}:{SB+8*sl+7}], v3, s[36:39], s57 offen {wflags}")
        q.issue(f"g{i}"); q.issue(f"g{i}")
    def issueWD(f):
        sl = f % 16
        a(f"s_mov_b32 s57, {(f//4)*4096}")
        a(f"buffer_load_dwordx4 v[{SB+4*sl}:{SB+4*sl+3}], v2, s[40:43], s57 offen offset:{(f%4)*1024} {wflags}")
        q.issue(f"d{f}")
    for i in range(8):
        issueGU(i)
    a(f"""
    s_barrier
    v_lshlrev_b32 v7, 7, v0        ; l*128
    s_waitcnt vmcnt({q.wait('x')})
    """)
    for e in range(8):
        for b in range(4):
            src = AC + 4 * b + e // 2
            dst = 8 + 4 * (e & 1) + b
            a(f"v_lshlrev_b32 v{dst}, 16, v{src}" if e % 2 == 0 else f"v_and_b32 v{dst}, s60, v{src}")
        a(f"ds_write_b128 v7, v[{8+4*(e&1)}:{11+4*(e&1)}] offset:{XT + e*16}")
    a(f"""
    v_lshlrev_b32 v7, 4, v5        ; r*16
    s_waitcnt lgkmcnt(0)
    """)
    for r in range(64):
        a(f"v_mov_b32 v{AC+r}, 0")
    a(f"ds_read_b128 v[8:11], v7 offset:{XT}")
    for i in range(32):
        xr = 8 + 4 * (i & 1)
        if i + 1 < 32:
            a(f"ds_read_b128 v[{8+4*((i+1)&1)}:{11+4*((i+1)&1)}], v7 offset:{XT + (i+1)*256}")
            a(f"s_waitcnt vmcnt({q.wait(f'g{i}')}) lgkmcnt(1)")
        else:
            a(f"s_waitcnt vmcnt({q.wait(f'g{i}')}) lgkmcnt(0)")
        sl = i % 8
        for mat in range(2):
            for r in range(4):
                a(f"v_lshlrev_b32 v{16+2*r}, 16, v{SB+8*sl+4*mat+r}")
                a(f"v_and_b32 v{17+2*r}, s60, v{SB+8*sl+4*mat+r}")
            for b in range(4):
                pp = xr + (b & ~1)
                sel = "op_sel_hi:[1,0,1]" if b % 2 == 0 else "op_sel:[0,1,0] op_sel_hi:[1,1,1]"
                for r in range(4):
                    d = AC + (mat * 4 + b) * 8 + 2 * r
                    a(f"v_pk_fma_f32 v[{d}:{d+1}], v[{16+2*r}:{17+2*r}], v[{pp}:{pp+1}], v[{d}:{d+1}] {sel}")
        if i + 8 < 32:
            issueGU(i + 8)
        else:
            issueWD(2 * (i - 24)); issueWD(2 * (i - 24) + 1)
    a(f"""
    v_lshlrev_b32 v7, 10, v5
    v_lshl_add_u32 v7, v6, 5, v7   ; r*1024 + pc*32
    """)
    for mb in range(8):
        a(f"ds_write_b128 v7, v[{AC+8*mb}:{AC+8*mb+3}] offset:{TT + mb*128}")
        a(f"ds_write_b128 v7, v[{AC+8*mb+4}:{AC+8*mb+7}] offset:{TT + mb*128 + 16}")
    a(f"""
    v_lshlrev_b32 v7, 3, v0
    s_waitcnt lgkmcnt(0)
    """)
    for mat in range(2):
        for r in range(16):
            d = AC + mat * 32 + 2 * r
            a(f"ds_read_b64 v[{d}:{d+1}], v7 offset:{TT + r*1024 + mat*512}")
    a("s_waitcnt lgkmcnt(0)")
    for mat in range(2):
        n = 16
        while n > 1:
            n //= 2
            for r in range(n):
                d = AC + mat * 32 + 2 * r
                s_ = d + 2 * n
                a(f"v_pk_add_f32 v[{d}:{d+1}], v[{d}:{d+1}], v[{s_}:{s_+1}]")
    Gv, Uv = AC, AC + 32
    a(f"""
    v_cvt_pk_bf16_f32 v8, v{Gv}, v{Gv+1}
    v_cvt_pk_bf16_f32 v9, v{Uv}, v{Uv+1}
    v_lshlrev_b32 v10, 16, v8
    v_and_b32 v11, s60, v8
    v_lshlrev_b32 v12, 16, v9
    v_and_b32 v13, s60, v9
    v_mul_f32 v14, s62, v10
    v_mul_f32 v15, s62, v11
    v_exp_f32 v14, -v14
    v_exp_f32 v15, -v15
    v_add_f32 v14, 1.0, v14
    v_add_f32 v15, 1.0, v15
    v_rcp_f32 v14, v14
    v_rcp_f32 v15, v15
    v_mul_f32 v10, v10, v14
    v_mul_f32 v11, v11, v15
    v_cvt_pk_bf16_f32 v8, v10, v11
    v_lshlrev_b32 v10, 16, v8
    v_and_b32 v11, s60, v8
    v_mul_f32 v10, v10, v12
    v_mul_f32 v11, v11, v13
    v_cvt_pk_bf16_f32 v8, v10, v11
    v_lshlrev_b32 v10, 16, v8
    v_and_b32 v11, s60, v8
    v_and_b32 v7, 15, v0
    v_lshlrev_b32 v7, 5, v7
    v_lshrrev_b32 v8, 4, v0
    v_lshl_add_u32 v7, v8, 2, v7
    ds_write_b32 v7, v10 offset:{HT}
    ds_write_b32 v7, v11 offset:{HT+16}
    v_mov_b32 v7, 0
    s_waitcnt lgkmcnt(0)
    """)
    for r in range(32):
        a(f"v_mov_b32 v{AC+r}, 0")
    a(f"ds_read_b128 v[8:11], v7 offset:{HT}")
    for f in range(32):
        xr = 8 + 4 * (f & 1)
        if f + 1 < 32:
            a(f"ds_read_b128 v[{8+4*((f+1)&1)}:{11+4*((f+1)&1)}], v7 offset:{HT + (f+1)*16}")
            a(f"s_waitcnt vmcnt({q.wait(f'd{f}')}) lgkmcnt(1)")
        else:
            a(f"s_waitcnt vmcnt({q.wait(f'd{f}')}) lgkmcnt(0)")
        sl = f % 16
        for r in range(4):
            a(f"v_lshlrev_b32 v{16+2*r}, 16, v{SB+4*sl+r}")
            a(f"v_and_b32 v{17+2*r}, s60, v{SB+4*sl+r}")
        for b in range(4):
            pp = xr + (b & ~1)
            sel = "op_sel_hi:[1,0,1]" if b % 2 == 0 else "op_sel:[0,1,0] op_sel_hi:[1,1,1]"
            for r in range(4):
                d = AC + b * 8 + 2 * r
                a(f"v_pk_fma_f32 v[{d}:{d+1}], v[{16+2*r}:{17+2*r}], v[{pp}:{pp+1}], v[{d}:{d+1}] {sel}")
        if f + 16 < 32:
            issueWD(f + 16)
    a(f"""
    s_lshl_b32 s9, s2, 13
    s_add_u32 s9, s9, {WS_Z}
    v_lshlrev_b32 v7, 5, v0
    v_add_u32 v7, s9, v7
    s_movk_i32 s57, 4096
    """)
    for b in range(4):
        so = "0" if b < 2 else "s57"
        a(f"buffer_store_dwordx4 v[{AC+8*b}:{AC+8*b+3}], v7, s[52:55], {so} offen offset:{(b&1)*2048}")
        a(f"buffer_store_dwordx4 v[{AC+8*b+4}:{AC+8*b+7}], v7, s[52:55], {so} offen offset:{(b&1)*2048+16}")
    a("s_endpgm")

    a.hist = []
    a.raw(".globl fin_kernel")
    a.raw(".p2align 8")
    a.raw(".type fin_kernel,@function")
    a.label("fin_kernel")
    a(f"""
    s_cmp_ge_u32 s2, 128
    s_cbranch_scc1 L_fend
    s_load_dwordx2 s[8:9], s[0:1], 96     ; ws
    s_load_dwordx2 s[16:17], s[0:1], 0    ; x
    s_load_dwordx2 s[20:21], s[0:1], 72   ; gate_w
    s_load_dwordx2 s[24:25], s[0:1], 80   ; out
    s_lshr_b32 s4, s2, 5          ; b
    s_and_b32 s5, s2, 31
    s_mov_b32 s10, {WS_Z}
    s_mov_b32 s11, 0x20000
    s_mov_b32 s14, {43*8192}
    s_mov_b32 s15, 0x20000
    s_mov_b32 s18, 4096
    s_mov_b32 s19, 0x20000
    s_mov_b32 s22, 1024
    s_mov_b32 s23, 0x20000
    s_mov_b32 s26, 4096
    s_mov_b32 s27, 0x20000
    s_mov_b32 s60, 0xffff0000
    s_mov_b32 s62, 0x{f2u(math.log2(math.e)):08x}
    v_lshrrev_b32 v1, 2, v0       ; j
    v_and_b32 v2, 3, v0           ; cq
    v_lshlrev_b32 v2, 4, v2
    s_lshl_b32 s6, s5, 6
    v_add_u32 v2, s6, v2          ; col0*4
    s_lshl_b32 s6, s4, 17
    v_lshl_add_u32 v3, v1, 12, v2
    v_add_u32 v3, s6, v3
    s_lshl_b32 s6, s4, 9
    s_add_u32 s6, s6, {WS_ML}
    v_lshlrev_b32 v4, 4, v1
    v_add_u32 v4, s6, v4
    s_lshl_b32 s6, s4, 11
    v_lshl_add_u32 v5, v1, 13, v2
    v_add_u32 v5, s6, v5
    v_lshlrev_b32 v6, 4, v0       ; l*16
    s_lshl_b32 s7, s4, 10
    s_mov_b32 s28, 0x10000
    s_mov_b32 s29, 0x20000
    s_mov_b32 s30, 0x40000
    s_waitcnt lgkmcnt(0)
    s_add_u32 s12, s8, {WS_Z}
    s_addc_u32 s13, s9, 0
    buffer_load_dwordx4 v[8:11], v4, s[8:11], 0 offen
    buffer_load_dwordx4 v[12:15], v4, s[8:11], 0 offen offset:256
    buffer_load_dwordx4 v[16:19], v3, s[8:11], 0 offen
    buffer_load_dwordx4 v[20:23], v3, s[8:11], 0 offen offset:2048
    buffer_load_dwordx4 v[24:27], v3, s[8:11], s28 offen
    buffer_load_dwordx4 v[28:31], v3, s[8:11], s28 offen offset:2048
    buffer_load_dwordx4 v[32:35], v5, s[12:15], 0 offen
    buffer_load_dwordx4 v[36:39], v5, s[12:15], s29 offen
    buffer_load_dwordx4 v[40:43], v5, s[12:15], s30 offen
    buffer_load_dwordx4 v[44:47], v6, s[16:19], s7 offen
    buffer_load_dwordx4 v[48:51], v6, s[20:23], 0 offen
    s_waitcnt vmcnt(9)
    """)
    for hb in (8, 12):
        a(f"""
        v_max_f32 v52, v{hb}, v{hb+2}
        v_sub_f32 v{hb}, v{hb}, v52
        v_sub_f32 v{hb+2}, v{hb+2}, v52
        v_exp_f32 v{hb}, v{hb}
        v_exp_f32 v{hb+2}, v{hb+2}
        v_mul_f32 v52, v{hb}, v{hb+1}
        v_fmac_f32 v52, v{hb+2}, v{hb+3}
        v_rcp_f32 v52, v52
        v_mul_f32 v{hb}, v{hb}, v52
        v_mul_f32 v{hb+2}, v{hb+2}, v52
        """)
    a("s_waitcnt vmcnt(5)")
    for h in range(2):
        a(f"v_pk_mul_f32 v[{16+2*h}:{17+2*h}], v[{16+2*h}:{17+2*h}], v[8:9] op_sel_hi:[1,0]")
    for src, w in ((20, 10), (24, 12), (28, 14)):
        for h in range(2):
            a(f"v_pk_fma_f32 v[{16+2*h}:{17+2*h}], v[{src+2*h}:{src+1+2*h}], v[{w}:{w+1}], v[{16+2*h}:{17+2*h}] op_sel_hi:[1,0,1]")
    a("s_waitcnt vmcnt(2)")
    for h in range(2):
        a(f"v_pk_add_f32 v[{20+2*h}:{21+2*h}], v[{32+2*h}:{33+2*h}], v[{36+2*h}:{37+2*h}]")
    for h in range(2):
        a(f"v_pk_add_f32 v[{20+2*h}:{21+2*h}], v[{20+2*h}:{21+2*h}], v[{40+2*h}:{41+2*h}]")
    a("s_waitcnt vmcnt(0)")
    for r in range(4):
        a(f"""
        v_lshlrev_b32 v26, 16, v{44+r}
        v_and_b32 v27, s60, v{44+r}
        v_lshlrev_b32 v28, 16, v{48+r}
        v_and_b32 v29, s60, v{48+r}
        v_pk_mul_f32 v[26:27], v[26:27], v[28:29]
        v_cvt_pk_bf16_f32 v26, v26, v27
        v_lshlrev_b32 v28, 16, v26
        v_and_b32 v29, s60, v26
        """)
        if r == 0:
            a("v_add_f32 v24, v28, v29")
        else:
            a("v_add_f32 v24, v24, v28")
            a("v_add_f32 v24, v24, v29")
    a("v_add_f32_dpp v24, v24, v24 quad_perm:[1,0,3,2] row_mask:0xf bank_mask:0xf")
    a("v_add_f32_dpp v24, v24, v24 quad_perm:[2,3,0,1] row_mask:0xf bank_mask:0xf")
    for r in range(16, 25):
        a(f"v_add_f32_dpp v{r}, v{r}, v{r} row_ror:4 row_mask:0xf bank_mask:0xf")
    for r in range(16, 25):
        a(f"v_add_f32_dpp v{r}, v{r}, v{r} row_ror:8 row_mask:0xf bank_mask:0xf")
    for sw in ("v_permlane16_swap_b32", "v_permlane32_swap_b32"):
        for r in range(16, 25):
            a(f"v_mov_b32 v{r+16}, v{r}")
        for r in range(16, 25):
            a(f"{sw} v{r}, v{r+16}")
        for r in range(16, 25):
            a(f"v_add_f32 v{r}, v{r}, v{r+16}")
    a(f"""
    v_cvt_pk_bf16_f32 v24, v24, v24
    v_lshlrev_b32 v24, 16, v24
    v_mul_f32 v24, s62, v24
    v_exp_f32 v24, -v24
    v_add_f32 v24, 1.0, v24
    v_rcp_f32 v24, v24
    v_cvt_pk_bf16_f32 v24, v24, v24
    v_lshlrev_b32 v24, 16, v24      ; g
    v_sub_f32 v26, 1.0, v24
    v_cvt_pk_bf16_f32 v26, v26, v26
    v_lshlrev_b32 v26, 16, v26      ; 1-g
    """)
    for h in range(2):
        for (src, w) in ((16, 24), (20, 26)):
            d = src + 2 * h
            a(f"""
            v_cvt_pk_bf16_f32 v30, v{d}, v{d+1}
            v_lshlrev_b32 v{d}, 16, v30
            v_and_b32 v{d+1}, s60, v30
            v_pk_mul_f32 v[{d}:{d+1}], v[{d}:{d+1}], v[{w}:{w+1}] op_sel_hi:[1,0]
            v_cvt_pk_bf16_f32 v30, v{d}, v{d+1}
            v_lshlrev_b32 v{d}, 16, v30
            v_and_b32 v{d+1}, s60, v30
            """)
        a(f"v_pk_add_f32 v[{16+2*h}:{17+2*h}], v[{16+2*h}:{17+2*h}], v[{20+2*h}:{21+2*h}]")
        a(f"v_cvt_pk_bf16_f32 v{32+h}, v{16+2*h}, v{17+2*h}")
    a(f"""
    v_lshrrev_b32 v2, 1, v2
    s_mov_b64 exec, 15
    buffer_store_dwordx2 v[32:33], v2, s[24:27], s7 offen
    L_fend:
    s_endpgm
    """)
    a.raw('.section .rodata,"a"')
    for name, nv, ns in ((K1, NV, 96), ("fin_kernel", 56, 64)):
        a.raw(f""".p2align 6
.amdhsa_kernel {name}
  .amdhsa_next_free_vgpr {nv}
  .amdhsa_next_free_sgpr {ns}
  .amdhsa_accum_offset {(nv + 3) // 4 * 4}
  .amdhsa_group_segment_fixed_size 0
  .amdhsa_kernarg_size 104
  .amdhsa_user_sgpr_count 2
  .amdhsa_user_sgpr_kernarg_segment_ptr 1
  .amdhsa_system_sgpr_workgroup_id_x 1
.end_amdhsa_kernel""")
    return a.text()


if __name__ == "__main__":
    import argparse
    ap = argparse.ArgumentParser()
    ap.add_argument("-o", default="cdna_kernels/%s.s" % NAME)
    ap.add_argument("-D", type=int, default=4)
    ap.add_argument("--kv", default="nt")
    ap.add_argument("--w", default="")
    ap.add_argument("--stamps", action="store_true")
    x = ap.parse_args()
    open(x.o, "w").write(gen(x.D, x.kv, x.w, x.stamps))
```

```python
import sys, struct, math
from asmlib import Asm

NAME = "gated_mix__mha_block_cached__swiglu_ffn__decode"

def f2u(x):
    return struct.unpack("<I", struct.pack("<f", x))[0]

HEADER = open("cdna_kernels/%s.s.ref" % NAME).read().split("; Override launch")[0]

WS_Y, WS_ML, WS_Z = 0, 512 * 1024, 1024 * 1024
WS_STAMP = 2 * 1024 * 1024
QP, QW, OP, ML, OW = 0, 4096, 6144, 10240, 10496
FLG = 12544
RED = 0
XT, TT, HT = 16384, 24576, 40960
SC = 41472
LDS_BYTES = SC + 16384
SEL = ["op_sel_hi:[1,0,1]", "op_sel:[0,1,0] op_sel_hi:[1,1,1]"]
SPIN = 1 << 16


class Q:
    def __init__(self):
        self.q = []
    def issue(self, tag):
        self.q.append(tag)
    def wait(self, tag):
        idx = [i for i, t in enumerate(self.q) if t == tag]
        if not idx:
            return None
        n = len(self.q) - 1 - max(idx)
        self.q = self.q[max(idx) + 1:]
        return n


def gen(kvflags="nt", wflags="nt", woflags="nt", stamps=False, noffn=False, RG=4, NPARK=8, wo_every=4, wo_start=0,
        sprio=0, gud=3, wdd=6, R=8, G2=False):
    a = Asm()
    NW = 8
    NU = 128
    RB = 32
    PB = RB + 4 * RG
    WB = PB + 4 * NPARK
    TMP = WB + 64 + 2
    NV = TMP + 8
    assert NV <= 168, NV
    assert NPARK % 4 == 0
    STEPB = NW * 4096 * (2 if G2 else 1)
    K1 = NAME + "_kernel"
    a.raw(HEADER.rstrip())
    a.raw("; @launch grid=(256,1,1) block=(%d,1,1) lds=%d" % ((NW + 1) * 64, LDS_BYTES))
    a.raw('.amdgcn_target "amdgcn-amd-amdhsa--gfx950"')
    a.raw(".text\n.globl %s\n.p2align 8\n.type %s,@function" % (K1, K1))
    a.label(K1)
    def stamp(i):
        if stamps:
            a(f"s_memrealtime s[{70+2*i}:{71+2*i}]")
    def wait(q, tag, extra=""):
        n = q.wait(tag)
        if n is not None:
            a(f"s_waitcnt vmcnt({n}) {extra}")
        elif extra:
            a(f"s_waitcnt {extra}")
    a(f"""
    s_cmp_ge_u32 s2, 256
    s_cbranch_scc1 L_end
    s_load_dwordx16 s[16:31], s[0:1], 0
    s_load_dwordx2 s[12:13], s[0:1], 96
    s_load_dwordx8 s[84:91], s[0:1], 64
    """)
    stamp(0)
    a(f"""
    v_lshrrev_b32 v1, 6, v0
    v_and_b32 v0, 63, v0
    v_readfirstlane_b32 s3, v1
    s_and_b32 s4, s2, 31          ; h
    s_lshr_b32 s5, s2, 6          ; b
    s_bfe_u32 s6, s2, 0x10005     ; split
    s_lshl_b32 s7, s5, 5
    s_add_u32 s7, s7, s4
    """)
    if G2:
        a(f"""
        s_lshl_b32 s8, s7, 21
        s_lshl_b32 s9, s6, 15
        s_add_u32 s8, s8, s9
        s_sub_u32 s34, 0x200000, s9
        s_mov_b32 s38, s34
        s_lshl_b32 s7, s7, 1
        s_add_u32 s7, s7, s6      ; row
        """)
    else:
        a(f"""
        s_lshl_b32 s7, s7, 1
        s_add_u32 s7, s7, s6
        s_lshl_b32 s8, s7, 20
        s_mov_b32 s34, 0x100000
        s_mov_b32 s38, 0x100000
        """)
    a(f"""
    s_mov_b32 s60, 0xffff0000
    s_mov_b32 s61, 0x{f2u(128 ** -0.5):08x}
    s_mov_b32 s62, 0x{f2u(math.log2(math.e)):08x}
    s_mov_b32 s35, 0x20000
    s_mov_b32 s39, 0x20000
    s_mov_b32 s43, 0x20000
    s_mov_b32 s47, 0x20000
    s_mov_b32 s51, 0x20000
    s_mov_b32 s55, 0x20000
    s_mov_b32 s67, 0x20000
    s_mov_b32 s50, 4096
    s_mov_b32 s54, 0x400000
    s_mov_b32 s66, 256
    s_cmp_eq_u32 s3, {NW}
    s_cbranch_scc1 L_side
    s_setprio 3
    v_lshlrev_b32 v2, 4, v0
    s_lshl_b32 s9, s3, 12
    v_add_u32 v2, s9, v2
    v_lshrrev_b32 v5, 4, v0       ; g
    v_and_b32 v6, 15, v0          ; c
    s_lshl_b32 s9, s5, 10
    s_lshl_b32 s10, s3, 7
    s_add_u32 s9, s9, s10
    v_lshlrev_b32 v7, 5, v5
    v_add_u32 v7, s9, v7          ; x voffset = b*1024 + (64w+16g)*2
    s_lshl_b32 s9, s3, 19
    v_lshlrev_b32 v3, 17, v5
    v_lshl_add_u32 v3, v6, 4, v3
    v_add_u32 v3, s9, v3
    s_lshl_b32 s10, s4, 8         ; h*256
    s_lshl_b32 s11, s4, 17        ; h*128*1024
    s_waitcnt lgkmcnt(0)
    s_add_u32 s36, s20, s8
    s_addc_u32 s37, s21, 0
    s_mov_b32 s48, s16
    s_mov_b32 s49, s17
    s_add_u32 s40, s22, s10
    s_addc_u32 s41, s23, 0
    s_sub_u32 s42, 0x400000, s10
    s_add_u32 s32, s18, s8
    s_addc_u32 s33, s19, 0
    """)
    q = Q()
    def ld(srd, reg, so, u, tag):
        a(f"buffer_load_dwordx4 v[{reg}:{reg+3}], v2, {srd}, {so} offen offset:{u*1024} {kvflags}")
        q.issue(tag)
    def ldWQ(i):
        a(f"s_mov_b32 s57, {i*8192}")
        a(f"buffer_load_dwordx4 v[{WB+4*i}:{WB+4*i+3}], v3, s[40:43], s57 offen {wflags}")
        q.issue("wq%d" % (i // 4))
    a(f"buffer_load_dwordx4 v[{TMP}:{TMP+3}], v7, s[48:51], 0 offen {wflags}")
    a(f"buffer_load_dwordx4 v[{TMP+4}:{TMP+7}], v7, s[48:51], 0 offen offset:16 {wflags}")
    q.issue("x"); q.issue("x")
    nwq = 0
    for j in range(NPARK):
        if j % 4 == 0:
            a(f"s_mov_b32 s56, {(j // 4) * STEPB}")
        ld("s[36:39]", PB + 4 * j, "s56", j % 4, f"P{j}")
        while nwq < 16 * (j + 1) // NPARK:
            ldWQ(nwq); nwq += 1
    while nwq < 16:
        ldWQ(nwq); nwq += 1
    a("s_setprio 0")
    a(f"""
    s_add_u32 s44, s24, s11
    s_addc_u32 s45, s25, 0
    s_mov_b32 s46, 0x20000
    s_mov_b32 s52, s12
    s_mov_b32 s53, s13
    s_mov_b32 s64, s90
    s_mov_b32 s65, s91
    s_lshl_b32 s9, s7, 11
    s_lshl_b32 s10, s3, 8
    s_add_u32 s9, s9, s10
    v_and_b32 v8, 7, v0
    v_lshlrev_b32 v10, 5, v8
    v_lshrrev_b32 v9, 5, v0
    v_lshl_add_u32 v10, v9, 4, v10
    v_add_u32 v3, s9, v10
    s_lshl_b32 s68, s7, 3
    s_add_u32 s68, s68, {WS_ML}
    v_lshrrev_b32 v4, 3, v0
    v_lshlrev_b32 v4, 14, v4
    v_lshl_add_u32 v4, v8, 4, v4
    s_lshl_b32 s9, s3, 7
    v_add_u32 v4, s9, v4
    s_lshl_b32 s9, s3, 9
    v_lshlrev_b32 v1, 5, v6
    v_lshl_add_u32 v1, v5, 3, v1
    v_add_u32 v1, s9, v1
    s_mov_b32 s57, 4096
    s_mov_b32 s58, 8192
    s_mov_b32 s59, 12288
    s_mov_b32 s56, 0
    """)
    for r in range(8):
        a(f"v_mov_b32 v{14+r}, 0")
    NT = 2 * NU - NPARK
    def ring_issue(n):
        if n >= NT:
            return
        isk = n < NU
        un = n if isk else n - NU + NPARK
        if un % 4 == 0 and n > 0:
            if n == NU:
                a(f"s_mov_b32 s56, {(NPARK // 4) * STEPB}")
            else:
                a(f"s_add_u32 s56, s56, {STEPB}")
        ld("s[32:35]" if isk else "s[36:39]", RB + 4 * (n % RG), "s56", un % 4, f"U{n}")
    for i in range(16):
        if i % 4 == 0:
            wait(q, 'wq%d' % (i // 4))
            if i == 0:
                stamp(1)
        if i % 2 == 0:
            a(f"v_lshlrev_b32 v30, 16, v{TMP + i // 2}")
            a(f"v_and_b32 v31, s60, v{TMP + i // 2}")
        for r in range(4):
            t = 22 + 2 * r
            a(f"v_lshlrev_b32 v{t}, 16, v{WB+4*i+r}")
            a(f"v_and_b32 v{t+1}, s60, v{WB+4*i+r}")
        for r in range(4):
            t = 22 + 2 * r
            a(f"v_pk_fma_f32 v[{14+2*r}:{15+2*r}], v[{t}:{t+1}], v[30:31], v[{14+2*r}:{15+2*r}] {SEL[i%2]}")
        if i == 11:
            for n in range(RG):
                ring_issue(n)

    def rowreduce8(b):
        for j in range(4):
            a(f"v_permlane32_swap_b32 v{b+j}, v{b+4+j}")
        a(f"v_pk_add_f32 v[{b}:{b+1}], v[{b}:{b+1}], v[{b+4}:{b+5}]")
        a(f"v_pk_add_f32 v[{b+2}:{b+3}], v[{b+2}:{b+3}], v[{b+6}:{b+7}]")
        for j in range(2):
            a(f"v_permlane16_swap_b32 v{b+j}, v{b+2+j}")
        a(f"v_pk_add_f32 v[{b}:{b+1}], v[{b}:{b+1}], v[{b+2}:{b+3}]")

    rowreduce8(14)
    a(f"""
    ds_write_b64 v1, v[14:15] offset:{QP}
    v_lshlrev_b32 v7, 3, v0       ; l*8
    s_waitcnt lgkmcnt(0)
    s_barrier
    """)
    for w in range(8):
        a(f"ds_read_b64 v[{14+2*w}:{15+2*w}], v7 offset:{QP + w*512}")
    a(f"""
    s_lshl_b32 s9, s3, 8
    v_lshlrev_b32 v8, 2, v0
    v_add_u32 v8, s9, v8          ; w*256 + l*4
    v_lshlrev_b32 v9, 4, v6
    v_add_u32 v9, s9, v9          ; w*256 + c*16
    s_waitcnt lgkmcnt(0)
    v_pk_add_f32 v[14:15], v[14:15], v[16:17]
    v_pk_add_f32 v[18:19], v[18:19], v[20:21]
    v_pk_add_f32 v[22:23], v[22:23], v[24:25]
    v_pk_add_f32 v[26:27], v[26:27], v[28:29]
    v_pk_add_f32 v[14:15], v[14:15], v[18:19]
    v_pk_add_f32 v[22:23], v[22:23], v[26:27]
    v_pk_add_f32 v[14:15], v[14:15], v[22:23]
    v_cvt_pk_bf16_f32 v14, v14, v15
    ds_write_b32 v8, v14 offset:{QW}
    s_waitcnt lgkmcnt(0)
    ds_read_b128 v[8:11], v9 offset:{QW}
    v_mov_b32 v12, 0xff800000
    v_mov_b32 v16, -1
    v_mov_b32 v17, -1
    v_mov_b32 v18, -1
    v_mov_b32 v19, -1
    s_mov_b32 exec_lo, 0xff
    s_mov_b32 exec_hi, 0xff
    buffer_store_dwordx4 v[16:19], v3, s[52:55], 0 offen sc1
    s_mov_b64 exec, 1
    s_cmp_lg_u32 s3, 0
    s_cbranch_scc1 L_noml
    buffer_store_dwordx2 v[16:17], off, s[52:55], s68 sc1
    L_noml:
    s_mov_b64 exec, -1
    s_lshl_b32 s9, s3, 11
    s_add_u32 s9, s9, {SC}
    v_lshlrev_b32 v13, 4, v5
    v_and_b32 v14, 4, v0
    v_lshlrev_b32 v14, 1, v14
    v_and_b32 v15, 8, v0
    v_lshrrev_b32 v15, 1, v15
    v_add3_u32 v13, v13, v14, v15
    v_add_u32 v13, s9, v13
    s_waitcnt lgkmcnt(0)
    """)
    stamp(2)

    nwo = [0]
    def issueWO():
        i = nwo[0]
        if i >= 16:
            return
        so = ["0", "s57", "s58", "s59"][i // 4]
        a(f"buffer_load_dwordx4 v[{WB+4*i}:{WB+4*i+3}], v4, s[44:47], {so} offen offset:{(i%4)*1024} {woflags}")
        q.issue("wo")
        nwo[0] += 1

    def kstep(t, lds_off, wo):
        for u in range(4):
            n = 4 * t + u
            rg = RB + 4 * (n % RG)
            wait(q, f"U{n}")
            a(f"v_dot2_f32_bf16 v{22+u}, v{rg}, v8, 0")
            for r in range(1, 4):
                a(f"v_dot2_f32_bf16 v{22+u}, v{rg+r}, v{8+r}, v{22+u}")
            ring_issue(n + RG)
            if wo and n >= wo_start:
                if wo_every >= 1:
                    if (n - wo_start) % wo_every == 0:
                        issueWO()
                else:
                    for _ in range(-wo_every):
                        issueWO()
        a(f"""
        v_add_f32_dpp v26, v22, v22 row_ror:8 row_mask:0xf bank_mask:0x3
        v_add_f32_dpp v27, v24, v24 row_ror:8 row_mask:0xf bank_mask:0x3
        v_add_f32_dpp v26, v23, v23 row_ror:8 row_mask:0xf bank_mask:0xc
        v_add_f32_dpp v27, v25, v25 row_ror:8 row_mask:0xf bank_mask:0xc
        v_add_f32_dpp v28, v26, v26 row_half_mirror row_mask:0xf bank_mask:0x5
        v_add_f32_dpp v28, v27, v27 row_half_mirror row_mask:0xf bank_mask:0xa
        v_add_f32_dpp v28, v28, v28 quad_perm:[1,0,3,2] row_mask:0xf bank_mask:0xf
        v_add_f32_dpp v28, v28, v28 quad_perm:[2,3,0,1] row_mask:0xf bank_mask:0xf
        v_cvt_pk_bf16_f32 v28, v28, v28
        v_lshlrev_b32 v28, 16, v28
        v_mul_f32 v28, s61, v28
        v_cvt_pk_bf16_f32 v28, v28, v28
        v_lshlrev_b32 v28, 16, v28
        v_mul_f32 v28, s62, v28
        v_max_f32 v12, v12, v28
        ds_write_b32 v13, v28 offset:{lds_off}
        """)

    LCM = RG * 4 // math.gcd(RG, 4) // 4
    def canonical(n):
        return q.q == [f"U{j}" for j in range(n, n + RG)]
    def shiftq(sh):
        q.q = ["U" + str(int(x[1:]) + sh) for x in q.q]
    NS = NU // 4
    t = 0
    ldsbase = 0
    nloop = 0
    lastk = (NU - RG) // 4
    while t < NS:
        iters = (lastk - t) // LCM
        if nwo[0] >= 16 and canonical(4 * t) and iters >= 2 and (4 * t) % RG == 0:
            if t != ldsbase:
                a(f"v_add_u32 v13, {(t - ldsbase) * 64}, v13")
            a(f"s_mov_b32 s63, {iters}")
            a.raw(".p2align 6")
            a.label(f"L_k{nloop}")
            for j in range(LCM):
                kstep(t + j, j * 64, False)
            a(f"v_add_u32 v13, {LCM * 64}, v13")
            a(f"s_sub_u32 s63, s63, 1\ns_cmp_lg_u32 s63, 0\ns_cbranch_scc1 L_k{nloop}")
            nloop += 1
            shiftq((iters - 1) * LCM * 4)
            t += iters * LCM
            ldsbase = t
        else:
            kstep(t, (t - ldsbase) * 64, True)
            t += 1
    assert nwo[0] == 16
    stamp(3)
    a(f"""
    s_lshl_b32 s9, s3, 11
    s_add_u32 s9, s9, {SC}
    v_lshlrev_b32 v13, 5, v0
    v_add_u32 v13, s9, v13        ; SC + w*2048 + l*32
    v_max_f32_dpp v12, v12, v12 row_ror:4 row_mask:0xf bank_mask:0xf
    v_max_f32_dpp v12, v12, v12 row_ror:8 row_mask:0xf bank_mask:0xf
    s_waitcnt lgkmcnt(0)
    ds_read_b128 v[14:17], v13
    ds_read_b128 v[18:21], v13 offset:16
    v_mov_b32 v27, v12
    v_permlane32_swap_b32 v12, v27
    v_max_f32 v12, v12, v27
    v_mov_b32 v27, v12
    v_permlane16_swap_b32 v12, v27
    v_max_f32 v26, v12, v27       ; Mw
    s_waitcnt lgkmcnt(0)
    """)
    for r in range(8):
        a(f"v_sub_f32 v{14+r}, v{14+r}, v26")
    for r in range(8):
        a(f"v_exp_f32 v{14+r}, v{14+r}")
    a(f"""
    ds_write_b128 v13, v[14:17]
    ds_write_b128 v13, v[18:21] offset:16
    v_pk_add_f32 v[22:23], v[14:15], v[16:17]
    v_pk_add_f32 v[24:25], v[18:19], v[20:21]
    v_pk_add_f32 v[22:23], v[22:23], v[24:25]
    v_add_f32 v27, v22, v23
    v_add_f32_dpp v27, v27, v27 quad_perm:[1,0,3,2] row_mask:0xf bank_mask:0xf
    v_add_f32_dpp v27, v27, v27 quad_perm:[2,3,0,1] row_mask:0xf bank_mask:0xf
    v_add_f32_dpp v27, v27, v27 row_ror:4 row_mask:0xf bank_mask:0xf
    v_add_f32_dpp v27, v27, v27 row_ror:8 row_mask:0xf bank_mask:0xf
    v_mov_b32 v28, v27
    v_permlane32_swap_b32 v27, v28
    v_add_f32 v27, v27, v28
    v_mov_b32 v28, v27
    v_permlane16_swap_b32 v27, v28
    v_add_f32 v27, v27, v28       ; lw
    s_lshl_b32 s10, s3, 3
    v_mov_b32 v28, s10
    s_mov_b64 exec, 1
    ds_write_b64 v28, v[26:27] offset:{ML}
    s_mov_b64 exec, -1
    v_lshlrev_b32 v13, 4, v5
    v_add_u32 v13, s9, v13
    s_waitcnt lgkmcnt(0)
    ds_read_b128 v[8:11], v13
    """)
    for r in range(8):
        a(f"v_mov_b32 v{14+r}, 0")
    PBUF = [8, 22]
    def pv_unit(rg, pb, u, after_unpack=None):
        pp = pb + (u & ~1)
        for r in range(4):
            a(f"v_lshlrev_b32 v{TMP+2*r}, 16, v{rg+r}")
            a(f"v_and_b32 v{TMP+2*r+1}, s60, v{rg+r}")
        if after_unpack:
            after_unpack()
        for r in range(4):
            a(f"v_pk_fma_f32 v[{14+2*r}:{15+2*r}], v[{TMP+2*r}:{TMP+2*r+1}], v[{pp}:{pp+1}], v[{14+2*r}:{15+2*r}] {SEL[u%2]}")
    def vstep(t, lds_off, par):
        if t + 1 < NS:
            nb = PBUF[par ^ 1]
            a(f"ds_read_b128 v[{nb}:{nb+3}], v13 offset:{lds_off + 64}")
            a("s_waitcnt lgkmcnt(1)")
        else:
            a("s_waitcnt lgkmcnt(0)")
        for u in range(4):
            un = 4 * t + u
            if un < NPARK:
                pv_unit(PB + 4 * un, PBUF[par], u)
            else:
                n = un - NPARK + NU
                wait(q, f"U{n}")
                pv_unit(RB + 4 * (n % RG), PBUF[par], u, lambda: ring_issue(n + RG))
    wreg = [[WB + 4 * i + r for r in range(4)] for i in range(16)]
    spare = [WB + 64]
    WP = {}
    def permute_wo(pairs):
        for p in pairs:
            for r in range(4):
                A, B = wreg[2 * p][r], wreg[2 * p + 1][r]
                lo = spare[0]
                a(f"v_perm_b32 v{lo}, v{B}, v{A}, s14")
                a(f"v_perm_b32 v{B}, v{B}, v{A}, s15")
                WP[(p, 2 * r)] = lo
                WP[(p, 2 * r + 1)] = B
                spare[0] = A
    a("s_mov_b32 s14, 0x05040100\ns_mov_b32 s15, 0x07060302")
    t = 0
    ldsbase = 0
    LV = LCM * 2 // math.gcd(LCM, 2)
    lastv = (NU - RG) // 4
    nperm = 0
    while t < NS:
        n0 = 4 * t - NPARK + NU
        iters = (lastv - t) // LV
        if nperm >= 8 and 4 * t >= NPARK and canonical(n0) and iters >= 2 and t % 2 == 0:
            if t != ldsbase:
                a(f"v_add_u32 v13, {(t - ldsbase) * 64}, v13")
            a(f"s_mov_b32 s63, {iters}")
            a.raw(".p2align 6")
            a.label(f"L_v{nloop}")
            for j in range(LV):
                vstep(t + j, j * 64, j & 1)
            a(f"v_add_u32 v13, {LV * 64}, v13")
            a(f"s_sub_u32 s63, s63, 1\ns_cmp_lg_u32 s63, 0\ns_cbranch_scc1 L_v{nloop}")
            nloop += 1
            shiftq((iters - 1) * LV * 4)
            t += iters * LV
            ldsbase = t
        else:
            vstep(t, (t - ldsbase) * 64, t & 1)
            if 4 * t >= NPARK and nperm < 8:
                permute_wo(range(nperm, nperm + 4)); nperm += 4
            t += 1
    stamp(4)
    F = RB
    assert WB - RB >= 40
    rowreduce8(14)
    a(f"""
    ds_write_b64 v1, v[14:15] offset:{OP}
    v_mov_b32 v28, 0
    v_mov_b32 v29, 1
    s_lshl_b32 s69, s5, 2
    s_lshl_b32 s9, s3, 8
    v_lshlrev_b32 v8, 2, v0
    v_add_u32 v8, s9, v8          ; w*256 + l*4
    v_lshrrev_b32 v9, 3, v0
    v_lshlrev_b32 v9, 5, v9
    v_add_u32 v9, s9, v9          ; w*256 + (l>>3)*32
    s_waitcnt vmcnt(0) lgkmcnt(0)
    s_barrier
    s_cmp_lg_u32 s3, 0
    s_cbranch_scc1 L_notick
    s_mov_b64 exec, 1
    buffer_atomic_add v29, off, s[64:67], s69 sc0 sc1
    buffer_load_dword v13, off, s[64:67], 0 offset:16 sc1
    s_mov_b64 exec, -1
    L_notick:
    """)
    for i in range(4):
        a(f"ds_read_b128 v[{F+4*i}:{F+4*i+3}], v28 offset:{ML + 16*i}")
    for w in range(8):
        a(f"ds_read_b64 v[{F+16+2*w}:{F+17+2*w}], v7 offset:{OP + w*512}")
    a(f"""
    s_waitcnt lgkmcnt(8)
    v_max3_f32 v26, v{F}, v{F+2}, v{F+4}
    v_max3_f32 v27, v{F+6}, v{F+8}, v{F+10}
    v_max3_f32 v26, v26, v{F+12}, v{F+14}
    v_max_f32 v26, v26, v27       ; M
    """)
    for w in range(8):
        a(f"v_sub_f32 v{F+2*w}, v{F+2*w}, v26")
    for w in range(8):
        a(f"v_exp_f32 v{F+2*w}, v{F+2*w}")
    a("s_waitcnt lgkmcnt(0)")
    a(f"v_pk_mul_f32 v[14:15], v[{F+16}:{F+17}], v[{F}:{F+1}] op_sel_hi:[1,0]")
    a(f"v_pk_mul_f32 v[16:17], v[{F+18}:{F+19}], v[{F+2}:{F+3}] op_sel_hi:[1,0]")
    for w in range(2, 8):
        d = 14 + 2 * (w & 1)
        a(f"v_pk_fma_f32 v[{d}:{d+1}], v[{F+16+2*w}:{F+17+2*w}], v[{F+2*w}:{F+2*w+1}], v[{d}:{d+1}] op_sel_hi:[1,0,1]")
    G = F + 32
    a(f"""
    v_pk_add_f32 v[14:15], v[14:15], v[16:17]
    v_cvt_pk_bf16_f32 v14, v14, v15
    ds_write_b32 v8, v14 offset:{OW}
    s_waitcnt lgkmcnt(0)
    ds_read_b128 v[{G}:{G+3}], v9 offset:{OW}
    ds_read_b128 v[{G+4}:{G+7}], v9 offset:{OW+16}
    s_cmp_lg_u32 s3, 0
    s_cbranch_scc1 L_noml2
    v_mul_f32 v27, v{F}, v{F+1}
    """)
    for w in range(1, 8):
        a(f"v_fmac_f32 v27, v{F+2*w}, v{F+2*w+1}")
    a(f"""
    s_mov_b64 exec, 1
    buffer_store_dwordx2 v[26:27], off, s[52:55], s68 sc1
    s_mov_b64 exec, -1
    L_noml2:
    """)
    for p in range(8):
        if p % 4 == 0:
            a(f"s_waitcnt lgkmcnt({1 - p // 4})")
        for c in range(8):
            src2 = "0" if p == 0 else f"v{14+c}"
            a(f"v_dot2_f32_bf16 v{14+c}, v{WP[(p, c)]}, v{G+p}, {src2}")
    for j in range(4):
        a(f"v_permlane32_swap_b32 v{14+j}, v{18+j}")
    a("v_pk_add_f32 v[20:21], v[16:17], v[20:21]")
    a("v_pk_add_f32 v[18:19], v[14:15], v[18:19]")
    for j in range(4):
        a(f"v_add_f32_dpp v{18+j}, v{18+j}, v{18+j} row_ror:8 row_mask:0xf bank_mask:0xf")
    for j in range(4):
        a(f"v_mov_b32 v{22+j}, v{18+j}")
    for j in range(4):
        a(f"v_permlane16_swap_b32 v{18+j}, v{22+j}")
    a("v_pk_add_f32 v[16:17], v[18:19], v[22:23]")
    a("v_pk_add_f32 v[18:19], v[20:21], v[24:25]")
    a(f"""
    s_mov_b32 exec_lo, 0xff
    s_mov_b32 exec_hi, 0xff
    buffer_store_dwordx4 v[16:19], v3, s[52:55], 0 offen sc1
    s_mov_b64 exec, -1
    """)
    stamp(5)
    a(f"""
    s_cmp_lg_u32 s3, 0
    s_cbranch_scc1 L_waitD
    s_waitcnt vmcnt(2)
    v_readfirstlane_b32 s10, v29
    v_readfirstlane_b32 s11, v13
    s_cmp_lt_u32 s10, {64 - R}
    s_cbranch_scc1 L_post
    s_lshl_b32 s11, s11, 8
    s_add_u32 s11, s11, s10
    s_cmp_eq_u32 s11, {(0 if noffn else 43) * 256 + 63}
    s_cbranch_scc1 L_post
    v_mov_b32 v30, s69
    v_mov_b32 v31, 64
    v_cmp_eq_u32 vcc, 1, v0
    v_mov_b32 v24, 16
    v_mov_b32 v25, {0 if noffn else 43}
    v_cndmask_b32 v30, v30, v24, vcc
    v_cndmask_b32 v31, v31, v25, vcc
    s_mov_b64 exec, 3
    s_mov_b32 s11, {SPIN}
    L_poll:
    buffer_load_dword v24, v30, s[64:67], 0 offen sc1
    s_waitcnt vmcnt(0)
    v_cmp_ne_u32 vcc, v24, v31
    s_sub_u32 s11, s11, 1
    s_cbranch_scc1 L_polled
    s_cbranch_vccz L_polled
    s_sleep 2
    s_branch L_poll
    L_polled:
    s_mov_b64 exec, -1
    L_post:
    v_mov_b32 v24, s10
    ds_write_b32 v28, v24 offset:{FLG}
    s_waitcnt lgkmcnt(0)
    L_waitD:
    s_barrier
    ds_read_b32 v24, v28 offset:{FLG}
    ds_read_b64 v[30:31], v28 offset:{FLG+8}
    s_lshl_b32 s9, s3, 2
    v_add_u32 v8, s9, v5          ; hh
    s_lshl_b32 s14, s5, 17        ; b*64*2048
    s_lshl_b32 s15, s5, 9
    s_add_u32 s15, s15, {WS_ML}
    s_lshl_b32 s9, s5, 11
    s_add_u32 s92, s12, {WS_Z}
    s_addc_u32 s93, s13, 0
    s_mov_b32 s94, {43 * 8192}
    s_mov_b32 s95, 0x20000
    s_add_u32 s57, s9, {32 * 8192}
    s_waitcnt lgkmcnt(0)
    v_readfirstlane_b32 s10, v24
    s_cmp_lt_u32 s10, {64 - R}
    s_cbranch_scc1 L_fin
    s_sub_u32 s10, s10, {64 - R}
    s_and_b32 s10, s10, {R - 1}
    s_lshl_b32 s11, s10, 8
    v_lshl_add_u32 v9, v6, 4, s11 ; cb*256 + c*16
    v_lshl_add_u32 v10, v8, 12, v9
    v_lshl_add_u32 v11, v8, 13, v9
    v_lshlrev_b32 v8, 4, v8
    buffer_load_dwordx4 v[{F+16}:{F+19}], v11, s[92:95], s9 offen sc1
    buffer_load_dwordx4 v[{F+20}:{F+23}], v11, s[92:95], s57 offen sc1
    s_mov_b32 s11, {SPIN}
    L_sweep:
    buffer_load_dwordx4 v[{F}:{F+3}], v8, s[52:55], s15 offen sc1
    buffer_load_dwordx4 v[{F+4}:{F+7}], v10, s[52:55], s14 offen sc1
    buffer_load_dwordx4 v[{F+8}:{F+11}], v10, s[52:55], s14 offen offset:2048 sc1
    s_waitcnt vmcnt(0)
    v_max3_u32 v24, v{F}, v{F+1}, v{F+2}
    v_max3_u32 v25, v{F+3}, v{F+4}, v{F+5}
    v_max3_u32 v26, v{F+6}, v{F+7}, v{F+8}
    v_max3_u32 v27, v{F+9}, v{F+10}, v{F+11}
    v_max3_u32 v24, v24, v25, v26
    v_max_u32 v24, v24, v27
    v_cmp_eq_u32 vcc, -1, v24
    s_sub_u32 s11, s11, 1
    s_cbranch_scc1 L_swept
    s_cbranch_vccnz L_sweep
    L_swept:
    v_max_f32 v24, v{F}, v{F+2}
    v_sub_f32 v{F}, v{F}, v24
    v_sub_f32 v{F+2}, v{F+2}, v24
    v_exp_f32 v{F}, v{F}
    v_exp_f32 v{F+2}, v{F+2}
    v_pk_add_f32 v[18:19], v[{F+16}:{F+17}], v[{F+20}:{F+21}]
    v_pk_add_f32 v[20:21], v[{F+18}:{F+19}], v[{F+22}:{F+23}]
    v_mul_f32 v24, v{F}, v{F+1}
    v_fmac_f32 v24, v{F+2}, v{F+3}
    v_rcp_f32 v24, v24
    v_mul_f32 v{F}, v{F}, v24
    v_mul_f32 v{F+2}, v{F+2}, v24
    v_pk_mul_f32 v[14:15], v[{F+4}:{F+5}], v[{F}:{F+1}] op_sel_hi:[1,0]
    v_pk_mul_f32 v[16:17], v[{F+6}:{F+7}], v[{F}:{F+1}] op_sel_hi:[1,0]
    v_pk_fma_f32 v[14:15], v[{F+8}:{F+9}], v[{F+2}:{F+3}], v[14:15] op_sel_hi:[1,0,1]
    v_pk_fma_f32 v[16:17], v[{F+10}:{F+11}], v[{F+2}:{F+3}], v[16:17] op_sel_hi:[1,0,1]
    """)
    rowreduce8(14)
    a(f"""
    ds_write_b64 v1, v[14:15] offset:{RED}
    v_lshrrev_b32 v8, 2, v0
    v_and_b32 v9, 3, v0
    v_lshlrev_b32 v8, 5, v8
    v_lshl_add_u32 v8, v9, 2, v8   ; (l>>2)*32 + (l&3)*4
    s_waitcnt lgkmcnt(0)
    s_barrier
    s_cmp_lg_u32 s3, 0
    s_cbranch_scc1 L_fin
    """)
    for w in range(8):
        a(f"ds_read2_b32 v[{F+2*w}:{F+2*w+1}], v8 offset0:{(RED + w*512)//4 % 256} offset1:{(RED + w*512)//4 % 256 + 4}")
        if w % 2 == 1 and w < 7:
            a(f"v_add_u32 v8, 1024, v8")
    a(f"""
    s_mov_b32 s96, s88
    s_mov_b32 s97, s89
    s_mov_b32 s98, 4096
    s_mov_b32 s99, 0x20000
    s_lshl_b32 s9, s5, 10
    s_lshl_b32 s11, s10, 7
    s_add_u32 s9, s9, s11
    v_lshlrev_b32 v9, 1, v0
    s_waitcnt lgkmcnt(0)
    v_pk_add_f32 v[{F}:{F+1}], v[{F}:{F+1}], v[{F+2}:{F+3}]
    v_pk_add_f32 v[{F+4}:{F+5}], v[{F+4}:{F+5}], v[{F+6}:{F+7}]
    v_pk_add_f32 v[{F+8}:{F+9}], v[{F+8}:{F+9}], v[{F+10}:{F+11}]
    v_pk_add_f32 v[{F+12}:{F+13}], v[{F+12}:{F+13}], v[{F+14}:{F+15}]
    v_pk_add_f32 v[{F}:{F+1}], v[{F}:{F+1}], v[{F+4}:{F+5}]
    v_pk_add_f32 v[{F+8}:{F+9}], v[{F+8}:{F+9}], v[{F+12}:{F+13}]
    v_pk_add_f32 v[{F}:{F+1}], v[{F}:{F+1}], v[{F+8}:{F+9}]     ; (a, f)
    v_cvt_pk_bf16_f32 v24, v{F}, v{F+1}
    v_lshlrev_b32 v26, 16, v24
    v_and_b32 v27, s60, v24
    v_pk_mul_f32 v[26:27], v[26:27], v[30:31]                   ; (g*a, (1-g)*f)
    v_cvt_pk_bf16_f32 v24, v26, v27
    v_lshlrev_b32 v26, 16, v24
    v_and_b32 v27, s60, v24
    v_add_f32 v26, v26, v27
    v_cvt_pk_bf16_f32 v24, v26, v26
    buffer_store_short v24, v9, s[96:99], s9 offen
    L_fin:
    """)
    if stamps:
        a(f"""
        L_stamp:
        s_waitcnt vmcnt(0)
        s_memrealtime s[82:83]
        s_waitcnt lgkmcnt(0)
        s_lshl_b32 s9, s3, 8
        s_add_u32 s9, s9, s2
        s_lshl_b32 s9, s9, 6
        s_add_u32 s9, s9, {WS_STAMP}
        v_mov_b32 v11, s9
        """)
        for i in range(14):
            a(f"v_mov_b32 v{32+i}, s{70+i}")
        a("s_mov_b64 exec, 1")
        for i in range(4):
            a(f"buffer_store_dwordx4 v[{32+4*i}:{35+4*i}], v11, s[52:55], 0 offen offset:{16*i}")
    a("""
    L_end:
    s_endpgm
    """)

    a.hist = []
    a.label("L_side")
    SB = 32
    AC = 80
    assert AC + 64 <= NV and SB + 8 * gud <= AC and SB + 4 * wdd <= AC
    if sprio:
        a(f"s_setprio {sprio}")
    a(f"""
    s_lshl_b32 s10, s2, 6          ; 64*j bytes
    s_lshl_b32 s11, s2, 15         ; 32*j rows * 1024
    v_lshlrev_b32 v2, 4, v0        ; l*16
    v_lshrrev_b32 v5, 2, v0        ; r
    v_and_b32 v6, 3, v0            ; pc
    s_movk_i32 s9, 2752
    v_mul_lo_u32 v3, v5, s9
    v_lshl_add_u32 v3, v6, 4, v3   ; r*2752 + pc*16
    s_lshl_b32 s9, s5, 10
    s_barrier
    s_waitcnt lgkmcnt(0)
    s_mov_b32 s48, s16
    s_mov_b32 s49, s17
    s_mov_b32 s44, s86
    s_mov_b32 s45, s87
    s_mov_b32 s46, 1024
    s_mov_b32 s52, s12
    s_mov_b32 s53, s13
    buffer_load_dwordx4 v[16:19], v2, s[48:51], s9 offen {wflags}
    buffer_load_dwordx4 v[20:23], v2, s[44:47], 0 offen {wflags}
    s_waitcnt vmcnt(0)
    """)
    for r in range(4):
        a(f"""
        v_lshlrev_b32 v26, 16, v{16+r}
        v_and_b32 v27, s60, v{16+r}
        v_lshlrev_b32 v28, 16, v{20+r}
        v_and_b32 v29, s60, v{20+r}
        v_pk_mul_f32 v[26:27], v[26:27], v[28:29]
        v_cvt_pk_bf16_f32 v26, v26, v27
        v_lshlrev_b32 v28, 16, v26
        v_and_b32 v29, s60, v26
        """)
        if r == 0:
            a("v_add_f32 v24, v28, v29")
        else:
            a("v_add_f32 v24, v24, v28")
            a("v_add_f32 v24, v24, v29")
    a(f"""
    v_add_f32_dpp v24, v24, v24 quad_perm:[1,0,3,2] row_mask:0xf bank_mask:0xf
    v_add_f32_dpp v24, v24, v24 quad_perm:[2,3,0,1] row_mask:0xf bank_mask:0xf
    v_add_f32_dpp v24, v24, v24 row_ror:4 row_mask:0xf bank_mask:0xf
    v_add_f32_dpp v24, v24, v24 row_ror:8 row_mask:0xf bank_mask:0xf
    v_mov_b32 v25, v24
    v_permlane16_swap_b32 v24, v25
    v_add_f32 v24, v24, v25
    v_mov_b32 v25, v24
    v_permlane32_swap_b32 v24, v25
    v_add_f32 v24, v24, v25
    v_cvt_pk_bf16_f32 v24, v24, v24
    v_lshlrev_b32 v24, 16, v24
    v_mul_f32 v24, s62, v24
    v_exp_f32 v24, -v24
    v_add_f32 v24, 1.0, v24
    v_rcp_f32 v24, v24
    v_cvt_pk_bf16_f32 v24, v24, v24
    v_lshlrev_b32 v24, 16, v24      ; g
    v_sub_f32 v25, 1.0, v24
    v_cvt_pk_bf16_f32 v25, v25, v25
    v_lshlrev_b32 v25, 16, v25      ; 1-g
    v_mov_b32 v26, 0
    s_mov_b64 exec, 1
    ds_write_b64 v26, v[24:25] offset:{FLG+8}
    s_mov_b64 exec, -1
    s_waitcnt lgkmcnt(0)
    s_cmp_ge_u32 s2, {0 if noffn else 43}
    s_cbranch_scc1 L_end
    s_add_u32 s32, s28, s10
    s_addc_u32 s33, s29, 0
    s_sub_u32 s34, {512*2752}, s10
    s_add_u32 s36, s30, s10
    s_addc_u32 s37, s31, 0
    s_mov_b32 s38, s34
    s_add_u32 s40, s84, s11
    s_addc_u32 s41, s85, 0
    s_mov_b32 s42, 32768
    s_mov_b32 s64, s90
    s_mov_b32 s65, s91
    """)
    q = Q()
    for b in range(4):
        a(f"buffer_load_dwordx4 v[{AC+4*b}:{AC+4*b+3}], v2, s[48:51], 0 offen offset:{b*1024} {wflags}")
        q.issue("x")
    def issueGU(i):
        sl = i % gud
        a(f"s_mov_b32 s57, {i*44032}")
        a(f"buffer_load_dwordx4 v[{SB+8*sl}:{SB+8*sl+3}], v3, s[32:35], s57 offen {wflags}")
        a(f"buffer_load_dwordx4 v[{SB+8*sl+4}:{SB+8*sl+7}], v3, s[36:39], s57 offen {wflags}")
        q.issue(f"g{i}"); q.issue(f"g{i}")
    def issueWD(f):
        sl = f % wdd
        a(f"s_mov_b32 s57, {(f//4)*4096}")
        a(f"buffer_load_dwordx4 v[{SB+4*sl}:{SB+4*sl+3}], v2, s[40:43], s57 offen offset:{(f%4)*1024} {wflags}")
        q.issue(f"d{f}")
    for i in range(gud):
        issueGU(i)
    a("v_lshlrev_b32 v7, 7, v0        ; l*128")
    wait(q, "x")
    stamp(1)
    for e in range(8):
        for b in range(4):
            src = AC + 4 * b + e // 2
            dst = 8 + 4 * (e & 1) + b
            a(f"v_lshlrev_b32 v{dst}, 16, v{src}" if e % 2 == 0 else f"v_and_b32 v{dst}, s60, v{src}")
        a(f"ds_write_b128 v7, v[{8+4*(e&1)}:{11+4*(e&1)}] offset:{XT + e*16}")
    a(f"""
    v_lshlrev_b32 v7, 4, v5        ; r*16
    s_waitcnt lgkmcnt(0)
    """)
    for r in range(64):
        a(f"v_mov_b32 v{AC+r}, 0")
    a(f"ds_read_b128 v[8:11], v7 offset:{XT}")
    for i in range(32):
        xr = 8 + 4 * (i & 1)
        if i + 1 < 32:
            a(f"ds_read_b128 v[{8+4*((i+1)&1)}:{11+4*((i+1)&1)}], v7 offset:{XT + (i+1)*256}")
            a(f"s_waitcnt vmcnt({q.wait(f'g{i}')}) lgkmcnt(1)")
        else:
            a(f"s_waitcnt vmcnt({q.wait(f'g{i}')}) lgkmcnt(0)")
        sl = i % gud
        for mat in range(2):
            for r in range(4):
                a(f"v_lshlrev_b32 v{16+8*mat+2*r}, 16, v{SB+8*sl+4*mat+r}")
                a(f"v_and_b32 v{17+8*mat+2*r}, s60, v{SB+8*sl+4*mat+r}")
        if i + gud < 32:
            issueGU(i + gud)
        for mat in range(2):
            for b in range(4):
                pp = xr + (b & ~1)
                for r in range(4):
                    d = AC + (mat * 4 + b) * 8 + 2 * r
                    a(f"v_pk_fma_f32 v[{d}:{d+1}], v[{16+8*mat+2*r}:{17+8*mat+2*r}], v[{pp}:{pp+1}], v[{d}:{d+1}] {SEL[b%2]}")
    for f in range(wdd):
        issueWD(f)
    stamp(2)
    a(f"""
    v_lshlrev_b32 v7, 10, v5
    v_lshl_add_u32 v7, v6, 5, v7   ; r*1024 + pc*32
    """)
    for mb in range(8):
        a(f"ds_write_b128 v7, v[{AC+8*mb}:{AC+8*mb+3}] offset:{TT + mb*128}")
        a(f"ds_write_b128 v7, v[{AC+8*mb+4}:{AC+8*mb+7}] offset:{TT + mb*128 + 16}")
    a(f"""
    v_lshlrev_b32 v7, 3, v0
    s_waitcnt lgkmcnt(0)
    """)
    for mat in range(2):
        for r in range(16):
            d = AC + mat * 32 + 2 * r
            a(f"ds_read_b64 v[{d}:{d+1}], v7 offset:{TT + r*1024 + mat*512}")
    a("s_waitcnt lgkmcnt(0)")
    for mat in range(2):
        n = 16
        while n > 1:
            n //= 2
            for r in range(n):
                d = AC + mat * 32 + 2 * r
                s_ = d + 2 * n
                a(f"v_pk_add_f32 v[{d}:{d+1}], v[{d}:{d+1}], v[{s_}:{s_+1}]")
    Gv, Uv = AC, AC + 32
    a(f"""
    v_cvt_pk_bf16_f32 v8, v{Gv}, v{Gv+1}
    v_cvt_pk_bf16_f32 v9, v{Uv}, v{Uv+1}
    v_lshlrev_b32 v10, 16, v8
    v_and_b32 v11, s60, v8
    v_lshlrev_b32 v12, 16, v9
    v_and_b32 v13, s60, v9
    v_mul_f32 v14, s62, v10
    v_mul_f32 v15, s62, v11
    v_exp_f32 v14, -v14
    v_exp_f32 v15, -v15
    v_add_f32 v14, 1.0, v14
    v_add_f32 v15, 1.0, v15
    v_rcp_f32 v14, v14
    v_rcp_f32 v15, v15
    v_mul_f32 v10, v10, v14
    v_mul_f32 v11, v11, v15
    v_cvt_pk_bf16_f32 v8, v10, v11
    v_lshlrev_b32 v10, 16, v8
    v_and_b32 v11, s60, v8
    v_mul_f32 v10, v10, v12
    v_mul_f32 v11, v11, v13
    v_cvt_pk_bf16_f32 v8, v10, v11
    v_lshlrev_b32 v10, 16, v8
    v_and_b32 v11, s60, v8
    v_and_b32 v7, 15, v0
    v_lshlrev_b32 v7, 5, v7
    v_lshrrev_b32 v8, 4, v0
    v_lshl_add_u32 v7, v8, 2, v7
    ds_write_b32 v7, v10 offset:{HT}
    ds_write_b32 v7, v11 offset:{HT+16}
    v_mov_b32 v7, 0
    """)
    stamp(3)
    a("s_waitcnt lgkmcnt(0)")
    for r in range(32):
        a(f"v_mov_b32 v{AC+r}, 0")
    a(f"ds_read_b128 v[8:11], v7 offset:{HT}")
    for f in range(32):
        xr = 8 + 4 * (f & 1)
        if f + 1 < 32:
            a(f"ds_read_b128 v[{8+4*((f+1)&1)}:{11+4*((f+1)&1)}], v7 offset:{HT + (f+1)*16}")
            a(f"s_waitcnt vmcnt({q.wait(f'd{f}')}) lgkmcnt(1)")
        else:
            a(f"s_waitcnt vmcnt({q.wait(f'd{f}')}) lgkmcnt(0)")
        sl = f % wdd
        for r in range(4):
            a(f"v_lshlrev_b32 v{16+2*r}, 16, v{SB+4*sl+r}")
            a(f"v_and_b32 v{17+2*r}, s60, v{SB+4*sl+r}")
        if f + wdd < 32:
            issueWD(f + wdd)
        for b in range(4):
            pp = xr + (b & ~1)
            for r in range(4):
                d = AC + b * 8 + 2 * r
                a(f"v_pk_fma_f32 v[{d}:{d+1}], v[{16+2*r}:{17+2*r}], v[{pp}:{pp+1}], v[{d}:{d+1}] {SEL[b%2]}")
    stamp(4)
    stamp(5)
    a(f"""
    s_lshl_b32 s9, s2, 13
    s_add_u32 s9, s9, {WS_Z}
    v_lshlrev_b32 v7, 5, v0
    v_add_u32 v7, s9, v7
    s_movk_i32 s57, 4096
    """)
    for b in range(4):
        so = "0" if b < 2 else "s57"
        a(f"buffer_store_dwordx4 v[{AC+8*b}:{AC+8*b+3}], v7, s[52:55], {so} offen offset:{(b&1)*2048} sc1")
        a(f"buffer_store_dwordx4 v[{AC+8*b+4}:{AC+8*b+7}], v7, s[52:55], {so} offen offset:{(b&1)*2048+16} sc1")
    a(f"""
    v_mov_b32 v8, 1
    s_waitcnt vmcnt(0)
    s_mov_b64 exec, 1
    buffer_atomic_add v8, off, s[64:67], 0 offset:16 sc1
    {"s_branch L_stamp" if stamps else "s_endpgm"}
    """)
    a.raw('.section .rodata,"a"')
    NVA = max(NV, 136)
    a.raw(f""".p2align 6
.amdhsa_kernel {K1}
  .amdhsa_next_free_vgpr {NVA}
  .amdhsa_next_free_sgpr 102
  .amdhsa_accum_offset {(NVA + 3) // 4 * 4}
  .amdhsa_group_segment_fixed_size 0
  .amdhsa_kernarg_size 104
  .amdhsa_user_sgpr_count 2
  .amdhsa_user_sgpr_kernarg_segment_ptr 1
  .amdhsa_system_sgpr_workgroup_id_x 1
.end_amdhsa_kernel""")
    return a.text()


if __name__ == "__main__":
    import argparse
    ap = argparse.ArgumentParser()
    ap.add_argument("-o", default="cdna_kernels/%s.s" % NAME)
    ap.add_argument("--kv", default="nt")
    ap.add_argument("--w", default="nt")
    ap.add_argument("--wo", default="nt")
    ap.add_argument("--RG", type=int, default=4)
    ap.add_argument("--park", type=int, default=8)
    ap.add_argument("--wo_every", type=int, default=4)
    ap.add_argument("--wo_start", type=int, default=0)
    ap.add_argument("--sprio", type=int, default=0)
    ap.add_argument("--gud", type=int, default=3)
    ap.add_argument("--wdd", type=int, default=6)
    for o in ("stamps", "noffn", "G2"):
        ap.add_argument("--" + o, action="store_true")
    x = ap.parse_args()
    t = gen(x.kv, x.w, x.wo, x.stamps, x.noffn, x.RG, x.park, x.wo_every, x.wo_start, x.sprio, x.gud, x.wdd, G2=x.G2)
    open(x.o, "w").write(t)
```
